```python
import torch

def _softmax(x, axis=-1):
    return torch.softmax(x, dim=axis)
def _gelu(x):
    return torch.nn.functional.gelu(x, approximate="tanh")
def _silu(x):
    return torch.nn.functional.silu(x)
def _sigmoid(x):
    return torch.sigmoid(x)
def _layernorm(x, axis=-1, eps=1e-5):
    m = x.mean(dim=axis, keepdim=True)
    v = x.var(dim=axis, keepdim=True, unbiased=False)
    return (x - m) / torch.sqrt(v + eps)
def _scatter_add(tgt, idx, src, axis=0):
    return tgt.clone().index_add_(axis, idx, src)
def _segment_sum(src, seg, n):
    out = torch.zeros((n,) + src.shape[1:], dtype=src.dtype)
    return out.index_add_(0, seg, src)
def _pad(x, pw):
    flat = tuple(v for pair in reversed(pw) for v in pair)
    return torch.nn.functional.pad(x, flat)

kernel_name = 'standalone__kernel_systems_refs_featgraph__graph'

def setup_inputs():

    _w = (lambda a: (lambda t: t.to(torch.bfloat16) if t.is_floating_point() else t)(torch.as_tensor(a)))
    N, deg, D = 10000, 16, 256
    E = N * deg
    scale = D ** -0.5
    src = (lambda lo, hi, *s: torch.randint(lo, hi, s))(0, N, E).to(torch.int64)
    dst = (lambda lo, hi, *s: torch.randint(lo, hi, s))(0, N, E).to(torch.int64)
    return {
        "x": _w((lambda *s: torch.randn(*s, dtype=torch.bfloat16) * 0.8)(N, D)),
        "src": _w(src),
        "dst": _w(dst),
        "w_q": _w((lambda *s: torch.randn(*s, dtype=torch.bfloat16) * 0.8)(D, D) * scale),
        "w_v": _w((lambda *s: torch.randn(*s, dtype=torch.bfloat16) * 0.05)(D, D) * scale),
    }

def reference(x, src, dst, w_q, w_v):
    N, D = x.shape
    xs = x[src]
    xd = x[dst]
    q = xd @ w_q
    logits = torch.einsum('ed,ed->e', xs, q) * (float(D) ** -0.5)
    alpha = _sigmoid(logits)
    msg = alpha[:, None] * (xs @ w_v)
    return _segment_sum(msg, dst, N)
```

```python
import sys

KNAME = "standalone__kernel_systems_refs_featgraph__graph_kernel"

class Cfg:
    stamps = False
    force_slow = False
    pref = 1
    wq_ahead = 2
    out_pol = "sc0 sc1"
    prio_g = 1

cfg = Cfg()
for a in sys.argv[2:]:
    k, v = a.split("=", 1)
    old = getattr(cfg, k)
    if isinstance(old, bool):
        v = v not in ("0", "False")
    elif isinstance(old, int):
        v = int(v)
    setattr(cfg, k, v)

N, E = 10000, 160000
NWG = 256
STG = 0
LIST = 8192
LROW = 92
LCAP = 44
PCNT = LIST + 40 * LROW
TAB = PCNT + 256
FLG = TAB + 96
F_TICK, F_CDONE, F_QSYNC, F_QRDY, F_OVF = FLG, FLG + 4, FLG + 8, FLG + 12, FLG + 16
XQO = 12288
WB = 32768
LDS_BYTES = 163840
WS_SLOTS = 4096
WS_STAMP = WS_SLOTS + NWG * 8192
WS_BYTES = WS_STAMP + (NWG * 16 * 16 * 8 if True else 0)
TAGSTEP = 0x5A700000

out = []
def e(s=""):
    for line in s.split("\n"):
        line = line.strip()
        if not line:
            continue
        if line.endswith(":"):
            out.append(line)
        else:
            out.append("    " + line)

def vr(a, n=1):
    return f"v{a}" if n == 1 else f"v[{a}:{a+n-1}]"
def sr(a, n=1):
    return f"s{a}" if n == 1 else f"s[{a}:{a+n-1}]"

sWG, sWAVE, sSTART, sNN = 2, 3, 4, 5
sT0, sT1 = 6, 7
SX, SA, SB, SC = 8, 12, 16, 20
STAMP0 = 64
SST = 96
sBND = 60
SPIN = f"s_add_u32 s{sBND}, s{sBND}, 128\ns_cbranch_scc1 L_end"

def stamp(i):
    if cfg.stamps:
        e(f"s_memrealtime {sr(STAMP0+2*i,2)}")

def stamp_flush(vtmp):
    if not cfg.stamps:
        return
    e(f"""
    s_waitcnt vmcnt(0) lgkmcnt(0)
    s_memrealtime {sr(STAMP0+30,2)}
    s_load_dwordx2 {sr(SST,2)}, s[0:1], 56
    s_mov_b32 {sr(SST+2)}, {WS_BYTES}
    s_mov_b32 {sr(SST+3)}, 0x20000
    s_mov_b64 exec, -1
    s_lshl_b32 {sr(sT0)}, {sr(sWG)}, 4
    s_add_u32 {sr(sT0)}, {sr(sT0)}, {sr(sWAVE)}
    s_lshl_b32 {sr(sT0)}, {sr(sT0)}, 7
    s_add_u32 {sr(sT0)}, {sr(sT0)}, {WS_STAMP}
    v_mov_b32 {vr(vtmp+1)}, 0
    s_waitcnt lgkmcnt(0)
    """)
    for i in range(32):
        e(f"v_mov_b32 {vr(vtmp)}, {sr(STAMP0+i)}")
        e(f"buffer_store_dword {vr(vtmp)}, {vr(vtmp+1)}, {sr(SST,4)}, {sr(sT0)} offen offset:{4*i}")
        e("s_waitcnt vmcnt(0)")

def header():
    out.append(f"""; Specialised for N=10000 nodes, E=160000 edges, D=256.
; @launch grid=({NWG},1,1) block=(1024,1,1) lds={LDS_BYTES}
.amdgcn_target "amdgcn-amd-amdhsa--gfx950"
.text
.globl {KNAME}
.p2align 8
.type {KNAME},@function
{KNAME}:""")

def footer():
    out.append(f""".section .rodata,"a"
.p2align 6
.amdhsa_kernel {KNAME}
  .amdhsa_next_free_vgpr 128
  .amdhsa_next_free_sgpr 102
  .amdhsa_accum_offset 128
  .amdhsa_group_segment_fixed_size 0
  .amdhsa_kernarg_size 64
  .amdhsa_user_sgpr_count 2
  .amdhsa_user_sgpr_kernarg_segment_ptr 1
  .amdhsa_system_sgpr_workgroup_id_x 1
  .amdhsa_float_denorm_mode_32 3
.end_amdhsa_kernel""")

def prologue():
    e(f"""
    s_cmp_ge_u32 s2, {NWG}
    s_cbranch_scc1 L_end
    v_readfirstlane_b32 {sr(sWAVE)}, v0
    s_load_dwordx2 {sr(SX,2)}, s[0:1], 0
    """)
    if cfg.stamps:
        for i in range(32):
            e(f"s_mov_b32 {sr(STAMP0+i)}, 0")
    stamp(0)
    e(f"""
    s_mul_i32 {sr(sT0)}, s2, 625
    s_add_u32 {sr(sSTART)}, {sr(sT0)}, 15
    s_add_u32 {sr(sNN)}, {sr(sT0)}, 640
    s_lshr_b32 {sr(sSTART)}, {sr(sSTART)}, 4
    s_lshr_b32 {sr(sNN)}, {sr(sNN)}, 4
    s_sub_u32 {sr(sNN)}, {sr(sNN)}, {sr(sSTART)}
    s_mov_b32 {sr(sBND)}, 0
    s_mov_b32 {sr(SX+2)}, {N*512}
    s_mov_b32 {sr(SX+3)}, 0x20000
    s_mov_b32 {sr(SA+3)}, 0x20000
    s_mov_b32 {sr(SB+3)}, 0x20000
    s_mov_b32 {sr(SC+3)}, 0x20000
    s_lshr_b32 {sr(sWAVE)}, {sr(sWAVE)}, 6
    s_cmp_ge_u32 {sr(sWAVE)}, 12
    s_cbranch_scc1 L_matrix
    """)

def gather():
    SS, SD, SW = SA, SB, SC
    sGRP, sCH, sEOFF = 24, 25, 26
    sEP = 27
    sK = [28, 29, 30, 31]
    sM = [32, 34, 36, 38]
    sEX = 40
    sNODE, sCNT, sNS, sMORE, sSLOT, sNEXT, sQOK, sOVF, sSPIN = 42, 43, 44, 45, 46, 47, 48, 49, 50
    sLB, sSCAN, sGN = 51, 52, 53
    sC1, sC2 = 54, 55
    DATA = 64
    vQ = 8
    vACC = 16
    vA = 20
    vP = 28
    vL = 32
    vCNT, vTK, vTA, vTB, vU, vW = 40, 41, 42, 43, 44, 45
    vL16, vG2, vM0, vM1, vIDX, vOOF, vONE, vZ = 46, 47, 48, 49, 50, 51, 52, 53
    vT = 54
    vTID = 0
    vD, vS, vUu, vCa, vRec, vSa, vPos = 64, 68, 72, 76, 80, 84, 88
    vG = 92
    vST, vPO = 96, 97
    vK, vNEG = 98, 99

    e(f"""
    s_load_dwordx2 {sr(SS,2)}, s[0:1], 8
    s_load_dwordx2 {sr(SD,2)}, s[0:1], 16
    s_load_dwordx2 {sr(SW,2)}, s[0:1], 56
    s_setprio {cfg.prio_g}
    v_mov_b32 v4, -1
    v_mov_b32 v5, -1
    v_mov_b32 v6, -1
    v_mov_b32 v7, -1
    v_lshlrev_b32 v1, 4, v0
    ds_write_b128 v1, v[4:7]
    s_mov_b32 {sr(SS+2)}, {E*4}
    s_mov_b32 {sr(SD+2)}, {E*4}
    s_mov_b32 {sr(SW+2)}, {WS_STAMP}
    s_lshr_b32 {sr(sGRP)}, s2, 6
    s_and_b32 {sr(sCH)}, s2, 63
    s_mul_i32 {sr(sEOFF)}, {sr(sCH)}, 10000
    v_cmp_gt_u32 vcc, 625, v0
    s_lshl_b32 {sr(sT0)}, {sr(sGRP)}, 8
    s_mov_b64 {sr(sEX,2)}, vcc
    s_cmp_ge_u32 {sr(sWAVE)}, 10
    s_waitcnt lgkmcnt(0)
    s_cbranch_scc1 L_g_noload
    s_mov_b64 exec, {sr(sEX,2)}
    buffer_load_dwordx4 {vr(vD,4)}, v1, {sr(SD,4)}, {sr(sEOFF)} offen
    buffer_load_dwordx4 {vr(vS,4)}, v1, {sr(SS,4)}, {sr(sEOFF)} offen
    s_mov_b64 exec, -1
L_g_noload:
    s_load_dword {sr(sEP)}, {sr(SW,2)}, {sr(sT0)}
    s_barrier
    """)
    stamp(1)
    e(f"""
    v_mov_b32 {vr(vONE)}, 1
    v_mov_b32 {vr(vZ)}, 0
    v_mov_b32 {vr(vK)}, 0x68db9
    s_lshl_b32 {sr(sT0)}, {sr(sGRP)}, 30
    s_sub_u32 {sr(sT0)}, 0, {sr(sT0)}
    v_mov_b32 {vr(vNEG)}, {sr(sT0)}
    v_and_b32 v2, 15, v0
    v_bfe_u32 v3, v0, 4, 2
    v_lshlrev_b32 {vr(vL16)}, 4, v2
    v_lshlrev_b32 {vr(vG2)}, 1, v3
    v_lshrrev_b32 v4, 1, v3
    v_and_b32 v5, 1, v3
    v_lshl_or_b32 {vr(vOOF)}, v4, 8, {vr(vL16)}
    v_lshl_or_b32 {vr(vOOF)}, v5, 3, {vr(vOOF)}
    v_lshrrev_b32 v5, 2, v2
    v_lshlrev_b32 v4, 1, v4
    v_mov_b32 v6, 0xffff
    v_cmp_eq_u32 vcc, v4, v5
    v_or_b32 v4, 1, v4
    v_and_b32 v7, 3, v0
    v_cndmask_b32 {vr(vM0)}, 0, v6, vcc
    v_cmp_eq_u32 vcc, v4, v5
    v_xor_b32 v4, 2, v7
    v_lshl_or_b32 v7, v4, 2, v7
    v_cndmask_b32 {vr(vM1)}, 0, v6, vcc
    v_mul_u32_u24 {vr(vIDX)}, 0x1111, v7
    v_mov_b32 {vr(vACC)}, 0
    v_mov_b32 {vr(vACC+1)}, 0
    v_mov_b32 {vr(vACC+2)}, 0
    v_mov_b32 {vr(vACC+3)}, 0
    """)
    e(f"""
    v_lshrrev_b32 v2, 3, v0
    v_add_u32 v3, {sr(sCH)}, v2
    v_and_b32 v3, 63, v3
    v_lshlrev_b32 v2, 13, v2
    v_lshl_or_b32 v2, v3, 7, v2
    v_and_b32 v3, 0x70, v1
    v_or_b32 {vr(vST)}, v2, v3
    s_lshl_b32 {sr(sC1)}, {sr(sGRP)}, 19
    s_add_u32 {sr(sC1)}, {sr(sC1)}, {WS_SLOTS}
    s_lshl_b32 {sr(sC2)}, s2, 13
    s_add_u32 {sr(sC2)}, {sr(sC2)}, {WS_SLOTS}
    s_mov_b32 {sr(sQOK)}, 0
    s_mov_b32 {sr(sMORE)}, 0
    s_mov_b32 {sr(sNODE)}, {sr(sWAVE)}
    s_cmp_ge_u32 {sr(sWAVE)}, 10
    s_cbranch_scc1 L_g_b1
    s_mov_b64 exec, {sr(sEX,2)}
    s_mov_b32 {sr(sT0)}, 0x40000000
    s_waitcnt vmcnt(1)
    """)
    stamp(2)
    for i in range(4):
        e(f"v_mad_u32_u24 {vr(vUu+i)}, {vr(vD+i)}, {vr(vK)}, {vr(vNEG)}")
    for i in range(4):
        e(f"v_cmp_gt_u32 {sr(sM[i],2)}, {sr(sT0)}, {vr(vUu+i)}")
        e(f"v_bfe_u32 {vr(vUu+i)}, {vr(vUu+i)}, 24, 6")
    for i in range(4):
        e(f"v_lshlrev_b32 {vr(vCa+i)}, 2, {vr(vUu+i)}")
    for i in range(4):
        e(f"s_mov_b64 exec, {sr(sM[i],2)}")
        e(f"ds_add_rtn_u32 {vr(vPos+i)}, {vr(vCa+i)}, {vr(vONE)} offset:{PCNT}")
    e(f"s_mov_b64 exec, {sr(sEX,2)}")
    for i in range(4):
        e(f"v_or_b32 {vr(vD+i)}, 0xffffffc0, {vr(vD+i)}")
        e(f"v_lshlrev_b32 {vr(vSa+i)}, 7, {vr(vUu+i)}")
    e("s_waitcnt vmcnt(0)")
    for i in range(4):
        e(f"v_lshl_or_b32 {vr(vRec+i)}, {vr(vD+i)}, 14, {vr(vS+i)}")
    e("s_waitcnt lgkmcnt(0)")
    for i in range(4):
        e(f"v_min_i32 {vr(vPos+i)}, 30, {vr(vPos+i)}")
    for i in range(4):
        e(f"v_lshl_add_u32 {vr(vSa+i)}, {vr(vPos+i)}, 2, {vr(vSa+i)}")
    for i in range(4):
        e(f"v_add_u32 {vr(vSa+i)}, {STG+4}, {vr(vSa+i)}")
    for i in range(4):
        e(f"s_mov_b64 exec, {sr(sM[i],2)}")
        e(f"ds_write_b32 {vr(vSa+i)}, {vr(vRec+i)}")
    e(f"""
    s_mov_b64 exec, -1
L_g_b1:
    s_waitcnt lgkmcnt(0)
    s_barrier
    """)
    stamp(3)
    e(f"""
    s_cmp_ge_u32 {sr(sWAVE)}, 8
    s_cbranch_scc1 L_g_wait_lists
    ds_read_b128 {vr(vG,4)}, v1 offset:{STG}
    s_add_u32 {sr(sEP)}, {sr(sEP)}, 0x100000
    s_and_b32 {sr(sEP)}, {sr(sEP)}, 0xfff00000
    s_xor_b32 {sr(sK[0])}, {sr(sEP)}, 0xfff00000
    s_add_u32 {sr(sK[1])}, {sr(sK[0])}, {hex(TAGSTEP)}
    s_add_u32 {sr(sK[2])}, {sr(sK[1])}, {hex(TAGSTEP)}
    s_add_u32 {sr(sK[3])}, {sr(sK[2])}, {hex(TAGSTEP)}
    s_mov_b32 {sr(sSPIN)}, 0
    s_waitcnt lgkmcnt(0)
    """)
    for i in range(4):
        e(f"v_xor_b32 {vr(vG+i)}, {sr(sK[i])}, {vr(vG+i)}")
    e(f"""
    buffer_store_dwordx4 {vr(vG,4)}, {vr(vST)}, {sr(SW,4)}, {sr(sC1)} offen sc0 sc1
    s_mov_b32 {sr(sT1)}, 0xfff00000
L_g_poll:
    buffer_load_dwordx4 {vr(vD,4)}, v1, {sr(SW,4)}, {sr(sC2)} offen sc0 sc1
    s_add_u32 {sr(sSPIN)}, {sr(sSPIN)}, 1
    s_cmp_gt_u32 {sr(sSPIN)}, 0x40000
    s_cbranch_scc1 L_g_timeout
    s_waitcnt vmcnt(0)
    """)
    for i in range(4):
        e(f"v_xor_b32 {vr(vD+i)}, {sr(sK[i])}, {vr(vD+i)}")
    e(f"""
    v_and_b32 {vr(vS)}, {vr(vD)}, {vr(vD+1)}
    v_bitop3_b32 {vr(vS)}, {vr(vS)}, {vr(vD+2)}, {vr(vD+3)} bitop3:0x80
    v_cmp_gt_u32 vcc, {sr(sT1)}, {vr(vS)}
    s_and_b64 exec, vcc, vcc
    s_cbranch_scc1 L_g_poll
    s_mov_b64 exec, -1
    """)
    stamp(4)
    e(f"s_movk_i32 {sr(sT0)}, 0x3fff")
    for i in range(4):
        e(f"v_lshrrev_b32 {vr(vUu+i)}, 14, {vr(vD+i)}")
        e(f"v_and_b32 {vr(vS+i)}, {sr(sT0)}, {vr(vD+i)}")
    for i in range(4):
        e(f"v_subrev_u32 {vr(vUu+i)}, {sr(sSTART)}, {vr(vUu+i)}")
        e(f"v_cmp_ne_u32 {sr(sM[i],2)}, {sr(sT0)}, {vr(vS+i)}")
    for i in range(4):
        e(f"v_and_b32 {vr(vUu+i)}, 63, {vr(vUu+i)}")
    for i in range(4):
        e(f"v_mul_u32_u24 {vr(vCa+i)}, {LROW}, {vr(vUu+i)}")
    for i in range(4):
        e(f"s_mov_b64 exec, {sr(sM[i],2)}")
        e(f"ds_add_rtn_u32 {vr(vPos+i)}, {vr(vCa+i)}, {vr(vONE)} offset:{LIST}")
    e(f"""
    s_mov_b32 {sr(sT0)}, 0x80808080
    s_mov_b32 {sr(sT1)}, 0x80808080
    s_and_b64 exec, {sr(sM[3],2)}, {sr(sT0,2)}
    s_cbranch_execz L_g_noovf
    ds_write_b32 {vr(vZ)}, {vr(vONE)} offset:{F_OVF}
L_g_noovf:
    s_mov_b64 exec, -1
    """)
    for i in range(4):
        e(f"v_add_u32 {vr(vCa+i)}, {LIST+6}, {vr(vCa+i)}")
    e("s_waitcnt lgkmcnt(0)")
    for i in range(4):
        e(f"v_min_i32 {vr(vPos+i)}, {LCAP-2}, {vr(vPos+i)}")
    for i in range(4):
        e(f"v_lshl_add_u32 {vr(vCa+i)}, {vr(vPos+i)}, 1, {vr(vCa+i)}")
    for i in range(4):
        e(f"s_mov_b64 exec, {sr(sM[i],2)}")
        e(f"ds_write_b16 {vr(vCa+i)}, {vr(vS+i)}")
    e(f"""
L_g_cdone:
    s_mov_b64 exec, 1
    ds_add_u32 {vr(vZ)}, {vr(vONE)} offset:{F_CDONE}
    s_mov_b64 exec, -1
L_g_wait_lists:
    {SPIN}
    ds_read_b32 {vr(vT)}, {vr(vZ)} offset:{F_CDONE}
    ds_read_b32 {vr(vT+1)}, {vr(vZ)} offset:{F_OVF}
    s_waitcnt lgkmcnt(0)
    v_readfirstlane_b32 {sr(sT0)}, {vr(vT)}
    v_readfirstlane_b32 {sr(sOVF)}, {vr(vT+1)}
    s_cmp_lg_u32 {sr(sT0)}, 7
    s_cbranch_scc1 L_g_wait_lists
    """)
    stamp(5)

    def read_list(snode):
        e(f"""
        s_mul_i32 {sr(sT0)}, {sr(snode)}, {LROW}
        v_add_u32 {vr(vT)}, {sr(sT0)}, {vr(vG2)}
        v_mov_b32 {vr(vT+1)}, {sr(sT0)}
        ds_read_b32 {vr(vCNT)}, {vr(vT+1)} offset:{LIST}
        """)
        for s in range(8):
            e(f"ds_read_u16 {vr(vL+7-s)}, {vr(vT)} offset:{LIST+4+8*s}")

    read_list(sNODE)
    e(f"""
    s_or_b32 {sr(sT0)}, {sr(sCH)}, {sr(sWAVE)}
    s_cmp_lg_u32 {sr(sT0)}, 0
    s_cbranch_scc1 L_node
    s_cmp_eq_u32 {sr(sOVF)}, 2
    s_cbranch_scc1 L_node
    s_lshl_b32 {sr(sT0)}, {sr(sGRP)}, 8
    v_mov_b32 {vr(vT+2)}, {sr(sEP)}
    s_mov_b64 exec, 1
    buffer_store_dword {vr(vT+2)}, {vr(vZ)}, {sr(SW,4)}, {sr(sT0)} offen sc0 sc1
    s_mov_b64 exec, -1
L_node:
    s_cmp_ge_u32 {sr(sNODE)}, {sr(sNN)}
    s_cbranch_scc1 L_g_exit
    s_waitcnt lgkmcnt(0)
    v_readfirstlane_b32 {sr(sCNT)}, {vr(vCNT)}
    s_cmp_lg_u32 {sr(sOVF)}, -1
    s_cbranch_scc1 L_slow
    """)
    if cfg.force_slow:
        e("s_branch L_slow")
    e(f"""
    s_add_u32 {sr(sNS)}, {sr(sCNT)}, 4
    s_lshr_b32 {sr(sNS)}, {sr(sNS)}, 2
    s_cmp_gt_u32 {sr(sNS)}, 8
    s_cbranch_scc1 L_big
L_chunk:
    """)
    order = [4, 5, 3, 6, 7, 2, 1, 0]
    def ladder(prefix, done):
        for n in order:
            e(f"s_cmp_eq_u32 {sr(sNS)}, {n}")
            e(f"s_cbranch_scc1 {prefix}{8-n}" if n else f"s_cbranch_scc1 {done}")
    ladder("L_iss", "L_issued")
    for b in range(8):
        d = DATA + 8 * b
        e(f"""
L_iss{b}:
        v_lshl_or_b32 {vr(d+4)}, {vr(vL+b)}, 9, {vr(vL16)}
        buffer_load_dwordx4 {vr(d,4)}, {vr(d+4)}, {sr(SX,4)}, 0 offen
        buffer_load_dwordx4 {vr(d+4,4)}, {vr(d+4)}, {sr(SX,4)}, 0 offen offset:256
        """)
    e(f"""
L_issued:
    s_cmp_lg_u32 {sr(sQOK)}, 0
    s_cbranch_scc1 L_qok
L_qwait:
    {SPIN}
    ds_read_b32 {vr(vT)}, {vr(vZ)} offset:{F_QRDY}
    s_waitcnt lgkmcnt(0)
    v_readfirstlane_b32 {sr(sT0)}, {vr(vT)}
    s_cmp_lg_u32 {sr(sT0)}, 3
    s_cbranch_scc1 L_qwait
    s_mov_b32 {sr(sQOK)}, 1
    """)
    stamp(6)
    e(f"""
L_qok:
    s_lshl_b32 {sr(sLB)}, {sr(sNODE)}, 9
    s_add_u32 {sr(sLB)}, {sr(sLB)}, {XQO}
    s_and_b32 {sr(sT0)}, {sr(sNODE)}, 15
    s_lshl_b32 {sr(sT0)}, {sr(sT0)}, 4
    s_or_b32 {sr(sT0)}, {sr(sT0)}, {sr(sLB)}
    v_xor_b32 {vr(vT+2)}, {sr(sT0)}, {vr(vL16)}
    s_cmp_lg_u32 {sr(sMORE)}, 0
    s_cbranch_scc1 L_nohook
    s_mov_b64 exec, 1
    ds_add_rtn_u32 {vr(vTK)}, {vr(vZ)}, {vr(vONE)} offset:{F_TICK}
    s_mov_b64 exec, -1
    ds_read_b128 {vr(vQ,4)}, {vr(vT+2)}
    ds_read_b128 {vr(vQ+4,4)}, {vr(vT+2)} offset:256
    s_waitcnt lgkmcnt(2)
    v_readfirstlane_b32 {sr(sSLOT)}, {vr(vTK)}
    s_add_u32 {sr(sNEXT)}, {sr(sSLOT)}, 13
    s_add_u32 {sr(sSLOT)}, {sr(sSLOT)}, 1
    """)
    read_list(sNEXT)
    e(f"""
    s_waitcnt lgkmcnt(9)
L_hooked:
    """)
    ladder("L_dot", "L_chunk_done")

    QUAD = [0, 2, 1, 3]
    def dot(b):
        d = DATA + 8 * b
        p = vP + (b & 3)
        e(f"L_dot{b}:")
        e(f"s_waitcnt vmcnt({2*(7-b)+1})")
        for j in range(8):
            if j == 4:
                e(f"s_waitcnt vmcnt({2*(7-b)})")
            e(f"v_dot2_f32_bf16 {vr(p)}, {vr(d+j)}, {vr(vQ+j)}, {vr(p) if j else '0'}")
    def reduce_sig():
        p = vP
        F = "row_mask:0xf"
        e(f"""
        s_nop 2
        v_add_f32_dpp {vr(vU)}, {vr(p)}, {vr(p)} row_ror:8 {F} bank_mask:0xf
        v_add_f32_dpp {vr(vW)}, {vr(p+2)}, {vr(p+2)} row_ror:8 {F} bank_mask:0xf
        v_add_f32_dpp {vr(vU)}, {vr(p+1)}, {vr(p+1)} row_ror:8 {F} bank_mask:0xc
        v_add_f32_dpp {vr(vW)}, {vr(p+3)}, {vr(p+3)} row_ror:8 {F} bank_mask:0xc
        s_nop 0
        v_add_f32_dpp {vr(vTA)}, {vr(vU)}, {vr(vU)} row_half_mirror {F} bank_mask:0xf
        v_add_f32_dpp {vr(vTA)}, {vr(vW)}, {vr(vW)} row_half_mirror {F} bank_mask:0xa
        s_nop 1
        v_add_f32_dpp {vr(vU)}, {vr(vTA)}, {vr(vTA)} quad_perm:[1,0,3,2] {F} bank_mask:0xf
        s_nop 1
        v_add_f32_dpp {vr(vW)}, {vr(vU)}, {vr(vU)} quad_perm:[2,3,0,1] {F} bank_mask:0xf
        v_mul_f32 {vr(vW)}, 0xbdb8aa3b, {vr(vW)}
        v_exp_f32 {vr(vW)}, {vr(vW)}
        s_nop 0
        v_add_f32 {vr(vW)}, 1.0, {vr(vW)}
        v_rcp_f32 {vr(vW)}, {vr(vW)}
        s_nop 0
        v_cvt_pk_bf16_f32 {vr(vTA)}, {vr(vW)}, {vr(vW)}
        v_cvt_pk_bf16_f32 {vr(vTB)}, {vr(vW)}, {vr(vW)}
        s_nop 1
        v_permlane32_swap_b32 {vr(vTA)}, {vr(vTB)}
        s_nop 1
        v_permlane16_swap_b32 {vr(vTA)}, {vr(vTB)}
        """)
    def pv(b):
        d = DATA + 8 * b
        a = vA + 4 * (b & 1)
        bc = 4 * QUAD[b & 3]
        F = f"row_newbcast:{bc} row_mask:0xf bank_mask:0xf"
        e(f"""
L_pv{b}:
        v_and_b32_dpp {vr(a)}, {vr(vTA)}, {vr(vM0)} {F}
        v_and_b32_dpp {vr(a+1)}, {vr(vTA)}, {vr(vM1)} {F}
        v_and_b32_dpp {vr(a+2)}, {vr(vTB)}, {vr(vM0)} {F}
        v_and_b32_dpp {vr(a+3)}, {vr(vTB)}, {vr(vM1)} {F}
        s_nop 1
        v_smfmac_f32_16x16x64_bf16 {vr(vACC,4)}, {vr(a,4)}, {vr(d,8)}, {vr(vIDX)}
        """)
    for b in range(4):
        dot(b)
    reduce_sig()
    for n in (5, 6, 7):
        e(f"s_cmp_eq_u32 {sr(sNS)}, {n}")
        e(f"s_cbranch_scc1 L_pv{8-n}")
    for b in range(4):
        pv(b)
    for b in range(4, 8):
        dot(b)
    reduce_sig()
    e(f"""
    s_cmp_lt_u32 {sr(sNS)}, 4
    s_cbranch_scc1 L_pv_short
    """)
    for b in range(4, 8):
        pv(b)
    e(f"""
L_chunk_done:
    s_cmp_lg_u32 {sr(sMORE)}, 0
    s_cbranch_scc1 L_more
    s_and_b32 {sr(sT0)}, {sr(sSLOT)}, 15
    s_lshl_b32 {sr(sT0)}, {sr(sT0)}, 4
    s_or_b32 {sr(sT0)}, {sr(sT0)}, {sr(sLB)}
    v_xor_b32 {vr(vT+2)}, {sr(sT0)}, {vr(vOOF)}
    s_lshl_b32 {sr(sT0)}, {sr(sSLOT)}, 1
    v_mov_b32 {vr(vT+3)}, {sr(sT0)}
    v_mov_b32 {vr(vT+6)}, {sr(sNODE)}
    s_mov_b32 {sr(sNODE)}, {sr(sNEXT)}
    s_nop 1
    v_cvt_pk_bf16_f32 {vr(vT+4)}, {vr(vACC)}, {vr(vACC+1)}
    v_cvt_pk_bf16_f32 {vr(vT+5)}, {vr(vACC+2)}, {vr(vACC+3)}
    v_mov_b32 {vr(vACC)}, 0
    v_mov_b32 {vr(vACC+1)}, 0
    ds_write_b64 {vr(vT+2)}, {vr(vT+4,2)}
    ds_write_b16 {vr(vT+3)}, {vr(vT+6)} offset:{TAB}
    v_mov_b32 {vr(vACC+2)}, 0
    v_mov_b32 {vr(vACC+3)}, 0
    s_branch L_node

L_pv_short:
    s_cmp_eq_u32 {sr(sNS)}, 3
    s_cbranch_scc1 L_pv5
    s_cmp_eq_u32 {sr(sNS)}, 2
    s_cbranch_scc1 L_pv6
    s_branch L_pv7

L_nohook:
    ds_read_b128 {vr(vQ,4)}, {vr(vT+2)}
    ds_read_b128 {vr(vQ+4,4)}, {vr(vT+2)} offset:256
    s_waitcnt lgkmcnt(0)
    s_branch L_hooked

L_big:
    s_cmp_ge_i32 {sr(sCNT)}, {LCAP}
    s_cbranch_scc1 L_slow
    s_sub_u32 {sr(sMORE)}, {sr(sNS)}, 8
    s_mov_b32 {sr(sNS)}, 8
    s_branch L_chunk

L_more:
    s_cmp_eq_u32 {sr(sMORE)}, -1
    s_cbranch_scc1 L_scan
    s_mov_b32 {sr(sNS)}, {sr(sMORE)}
    s_mov_b32 {sr(sMORE)}, 0
    s_mul_i32 {sr(sT0)}, {sr(sNODE)}, {LROW}
    v_add_u32 {vr(vT)}, {sr(sT0)}, {vr(vG2)}
    """)
    for s in range(3):
        e(f"ds_read_u16 {vr(vL+7-s)}, {vr(vT)} offset:{LIST+4+64+8*s}")
    e(f"""
    s_waitcnt lgkmcnt(0)
    s_branch L_chunk

L_slow:
    s_mov_b32 {sr(sMORE)}, -1
    s_mov_b32 {sr(sSCAN)}, 0
    s_add_u32 {sr(sGN)}, {sr(sNODE)}, {sr(sSTART)}
L_scan:
    s_cmp_ge_u32 {sr(sSCAN)}, {E*4}
    s_cbranch_scc1 L_scan_end
    v_and_b32 {vr(vT)}, 31, v0
    v_lshlrev_b32 {vr(vT)}, 2, {vr(vT)}
    buffer_load_dword {vr(vT+1)}, {vr(vT)}, {sr(SD,4)}, {sr(sSCAN)} offen
    buffer_load_dword {vr(vT+2)}, {vr(vT)}, {sr(SS,4)}, {sr(sSCAN)} offen
    s_add_u32 {sr(sSCAN)}, {sr(sSCAN)}, 128
    s_waitcnt vmcnt(0)
    v_cmp_eq_u32 vcc, {sr(sGN)}, {vr(vT+1)}
    s_nop 4
    s_bcnt1_i32_b32 {sr(sNS)}, vcc_lo
    s_cbranch_scc0 L_scan
    s_mul_i32 {sr(sT0)}, {sr(sNODE)}, {LROW}
    v_lshrrev_b32 {vr(vT)}, 1, {vr(vT)}
    v_add_u32 {vr(vT)}, {sr(sT0)}, {vr(vT)}
    v_mov_b32 {vr(vT+3)}, -1
    ds_write_b16 {vr(vT)}, {vr(vT+3)} offset:{LIST+4}
    v_mbcnt_lo_u32_b32 {vr(vT+4)}, vcc_lo, 0
    v_lshlrev_b32 {vr(vT+4)}, 1, {vr(vT+4)}
    v_add_u32 {vr(vT+4)}, {sr(sT0)}, {vr(vT+4)}
    s_mov_b32 exec_lo, vcc_lo
    s_mov_b32 exec_hi, 0
    ds_write_b16 {vr(vT+4)}, {vr(vT+2)} offset:{LIST+4}
    s_mov_b64 exec, -1
    s_add_u32 {sr(sNS)}, {sr(sNS)}, 3
    s_lshr_b32 {sr(sNS)}, {sr(sNS)}, 2
    v_add_u32 {vr(vT)}, {sr(sT0)}, {vr(vG2)}
    """)
    for s in range(8):
        e(f"ds_read_u16 {vr(vL+7-s)}, {vr(vT)} offset:{LIST+4+8*s}")
    e(f"""
    s_waitcnt lgkmcnt(0)
    s_branch L_chunk
L_scan_end:
    s_mov_b32 {sr(sMORE)}, 0
    s_mov_b32 {sr(sNS)}, 0
    s_branch L_chunk

L_g_timeout:
    s_waitcnt vmcnt(0)
    s_mov_b64 exec, -1
    v_mov_b32 {vr(vT)}, 2
    ds_write_b32 {vr(vZ)}, {vr(vT)} offset:{F_OVF}
    s_branch L_g_cdone

L_g_exit:
    """)
    stamp_flush(vT)
    e("s_endpgm")

def matrix():
    SQ, SV, SO = SA, SB, SC
    sM4 = 24
    sWL = 25
    sKO = 26
    sXO = 27
    sTILE = 28
    sVAL = 30
    vDA = 2
    vTR = 6
    vXA = 10
    vZ, vONE = 14, 15
    vACC = 16
    vBUF = 64
    vT = 120
    e(f"""
L_matrix:
    s_load_dwordx2 {sr(SQ,2)}, s[0:1], 24
    s_load_dwordx2 {sr(SV,2)}, s[0:1], 32
    s_load_dwordx2 {sr(SO,2)}, s[0:1], 40
    s_mov_b32 {sr(SQ+2)}, 131072
    s_mov_b32 {sr(SV+2)}, 131072
    s_mov_b32 {sr(SO+2)}, {N*512}
    s_sub_u32 {sr(sM4)}, {sr(sWAVE)}, 12
    s_lshl_b32 {sr(sWL)}, {sr(sM4)}, 15
    s_add_u32 {sr(sWL)}, {sr(sWL)}, {WB}
    v_and_b32 v0, 63, v0
    """)
    vXD = vBUF
    e(f"""
    s_mul_i32 {sr(sT0)}, {sr(sM4)}, 10
    v_lshrrev_b32 v1, 5, v0
    v_add_u32 v1, {sr(sT0)}, v1
    v_and_b32 {vr(vT)}, 31, v0
    """)
    for i in range(5):
        e(f"""
        v_add_u32 {vr(vT+1)}, {2*i}, v1
        v_and_b32 {vr(vT+2)}, 15, {vr(vT+1)}
        v_xor_b32 {vr(vT+2)}, {vr(vT)}, {vr(vT+2)}
        v_lshlrev_b32 {vr(vT+2)}, 4, {vr(vT+2)}
        v_lshl_or_b32 {vr(vXD+i)}, {vr(vT+1)}, 9, {vr(vT+2)}
        """)
    e(f"""
    v_lshrrev_b32 v1, 3, v0
    v_and_b32 {vr(vT)}, 7, v0
    v_and_b32 {vr(vT+1)}, 2, v1
    v_xor_b32 {vr(vT)}, {vr(vT)}, {vr(vT+1)}
    v_lshlrev_b32 {vr(vT)}, 4, {vr(vT)}
    v_lshl_or_b32 {vr(vT)}, v1, 9, {vr(vT)}
    s_lshl_b32 {sr(sT0)}, {sr(sM4)}, 7
    v_or_b32 {vr(vDA)}, {sr(sT0)}, {vr(vT)}
    v_xor_b32 {vr(vT)}, 64, {vr(vDA)}
    v_add_u32 {vr(vDA+1)}, {3072}, {vr(vT)}
    v_add_u32 {vr(vDA+2)}, {2*3072}, {vr(vDA)}
    v_add_u32 {vr(vDA+3)}, {3*3072}, {vr(vT)}
    s_lshl_b32 {sr(sXO)}, {sr(sSTART)}, 9
    s_mul_i32 {sr(sT0)}, {sr(sM4)}, 5120
    s_add_u32 {sr(sT0)}, {sr(sT0)}, {XQO}
    s_mov_b32 m0, {sr(sT0)}
    s_waitcnt lgkmcnt(0)
    s_barrier
    """)
    stamp(1)
    for i in range(5):
        e(f"buffer_load_dwordx4 {vr(vXD+i)}, {sr(SX,4)}, {sr(sXO)} offen lds")
        if i < 4:
            e("s_add_u32 m0, m0, 1024")
            e("s_nop 0")
    vm = ["x"] * 5

    def wdma(srd, s, tag):
        e(f"""
        s_add_u32 m0, {sr(sWL)}, {s*4096}
        s_mov_b32 {sr(sKO)}, {s*16384}
        """)
        for j in range(4):
            e(f"buffer_load_dwordx4 {vr(vDA+j)}, {sr(srd,4)}, {sr(sKO)} offen offset:{1024*j} lds")
            vm.append(tag)
    def wait_vm(tag):
        last = max(i for i, t in enumerate(vm) if t == tag)
        e(f"s_waitcnt vmcnt({len(vm)-1-last})")
        del vm[:last + 1]

    wdma(SQ, 0, "q0")
    e(f"""
    v_mov_b32 {vr(vZ)}, 0
    v_mov_b32 {vr(vONE)}, 1
    v_lshrrev_b32 v1, 4, v0
    v_and_b32 {vr(vT)}, 15, v0
    v_xor_b32 {vr(vT+1)}, v1, {vr(vT)}
    v_lshlrev_b32 {vr(vT+1)}, 4, {vr(vT+1)}
    v_add_u32 {vr(vT+7)}, {XQO}, {vr(vT+1)}
    v_lshl_add_u32 {vr(vXA)}, {vr(vT)}, 9, {vr(vT+7)}
    v_xor_b32 {vr(vXA+1)}, 64, {vr(vXA)}
    v_xor_b32 {vr(vXA+2)}, 128, {vr(vXA)}
    v_xor_b32 {vr(vXA+3)}, 192, {vr(vXA)}
    v_bfe_u32 {vr(vT+1)}, v0, 2, 2
    v_lshlrev_b32 {vr(vT+2)}, 10, v1
    v_lshl_or_b32 {vr(vT+2)}, {vr(vT+1)}, 7, {vr(vT+2)}
    v_bfe_u32 {vr(vT+1)}, v0, 3, 2
    v_lshl_or_b32 {vr(vT+2)}, {vr(vT+1)}, 5, {vr(vT+2)}
    v_and_b32 {vr(vT+1)}, 3, v0
    v_lshl_or_b32 {vr(vT+2)}, {vr(vT+1)}, 3, {vr(vT+2)}
    v_add_u32 {vr(vTR)}, {sr(sWL)}, {vr(vT+2)}
    v_xor_b32 {vr(vTR+1)}, 32, {vr(vTR)}
    v_xor_b32 {vr(vTR+2)}, 64, {vr(vTR)}
    v_xor_b32 {vr(vTR+3)}, 96, {vr(vTR)}
    """)
    vXC = vT + 7
    wait_vm("x")
    e("s_barrier")
    stamp(2)
    nxt = 1
    while nxt < min(8, 1 + cfg.wq_ahead):
        wdma(SQ, nxt, f"q{nxt}")
        nxt += 1

    def rd_w(dst, s):
        for t in range(4):
            for hh in range(2):
                e(f"ds_read_b64_tr_b16 {vr(dst+4*t+2*hh,2)}, {vr(vTR+t)} offset:{s*4096+hh*512}")
    def rd_g1(s):
        b = vBUF + 28 * (s & 1)
        for t in range(3):
            e(f"ds_read_b128 {vr(b+16+4*t,4)}, {vr(vXA+(s&3))} offset:{t*8192+(s>>2)*256}")
        rd_w(b, s)
    def prefetch():
        if cfg.pref <= 0:
            return
        e(f"""
        v_lshlrev_b32 {vr(vT)}, 7, v0
        s_mul_i32 {sr(sT0)}, {sr(sM4)}, {8192*cfg.pref}
        s_add_u32 {sr(sT0)}, {sr(sT0)}, {sr(sXO)}
        s_add_u32 {sr(sT0)}, {sr(sT0)}, {40*512}
        """)
        for i in range(cfg.pref):
            e(f"buffer_load_dword {vr(vT+1)}, {vr(vT)}, {sr(SX,4)}, {sr(sT0)} offen")
            vm.append("p")
            if i + 1 < cfg.pref:
                e(f"s_add_u32 {sr(sT0)}, {sr(sT0)}, 8192")

    wait_vm("q0")
    rd_g1(0)
    for s in range(8):
        if nxt < 8:
            wdma(SQ, nxt, f"q{nxt}")
            nxt += 1
            if nxt == 8:
                prefetch()
        if s < 7:
            wait_vm(f"q{s+1}")
            rd_g1(s + 1)
            e("s_waitcnt lgkmcnt(11)")
        else:
            e("s_waitcnt lgkmcnt(0)")
            e(f"""
            s_mov_b64 exec, 1
            ds_add_u32 {vr(vZ)}, {vr(vONE)} offset:{F_QSYNC}
            s_mov_b64 exec, -1
            s_nop 3
            """)
        b = vBUF + 28 * (s & 1)
        for t in range(3):
            for c in range(4):
                a = vACC + 16 * t + 4 * c
                e(f"v_mfma_f32_16x16x32_bf16 {vr(a,4)}, {vr(b+4*c,4)}, {vr(b+16+4*t,4)}, {vr(a,4) if s else '0'}")
    stamp(3)
    nv = 0
    while nv < 2:
        wdma(SV, nv, f"v{nv}")
        nv += 1
    vQA = vBUF
    e(f"""
    v_lshrrev_b32 v1, 5, v0
    s_lshl_b32 {sr(sT0)}, {sr(sM4)}, 3
    v_or_b32 v1, {sr(sT0)}, v1
    v_and_b32 {vr(vT)}, 15, v0
    v_xor_b32 v1, v1, {vr(vT)}
    v_lshlrev_b32 v1, 4, v1
    v_lshl_or_b32 v1, {vr(vT)}, 9, v1
    v_bfe_u32 {vr(vT+2)}, v0, 4, 1
    v_lshl_or_b32 v1, {vr(vT+2)}, 3, v1
    v_add_u32 {vr(vQA)}, {XQO}, v1
    v_xor_b32 {vr(vQA+1)}, 32, {vr(vQA)}
    v_xor_b32 {vr(vQA+2)}, 64, {vr(vQA)}
    v_xor_b32 {vr(vQA+3)}, 96, {vr(vQA)}
L_m_qsync:
    {SPIN}
    ds_read_b32 {vr(vT+3)}, {vr(vZ)} offset:{F_QSYNC}
    s_waitcnt lgkmcnt(0)
    v_readfirstlane_b32 {sr(sT0)}, {vr(vT+3)}
    s_cmp_lg_u32 {sr(sT0)}, 3
    s_cbranch_scc1 L_m_qsync
    """)
    for t in range(3):
        if t == 2:
            e("s_mov_b32 exec_lo, 0x00ff00ff")
            e("s_mov_b32 exec_hi, 0x00ff00ff")
        for c in range(4):
            a = vACC + 16 * t + 4 * c
            e(f"v_cvt_pk_bf16_f32 {vr(a)}, {vr(a)}, {vr(a+1)}")
            e(f"v_cvt_pk_bf16_f32 {vr(a+1)}, {vr(a+2)}, {vr(a+3)}")
            e(f"ds_write_b64 {vr(vQA+c)}, {vr(a,2)} offset:{t*8192}")
    e(f"""
    s_mov_b64 exec, 1
    ds_add_u32 {vr(vZ)}, {vr(vONE)} offset:{F_QRDY}
    s_mov_b64 exec, -1
    """)
    stamp(4)
    while nv < 8:
        wait_vm(f"v{nv-2}")
        wdma(SV, nv, f"v{nv}")
        nv += 1
    vW = 16
    vO = 80
    vA2 = 112
    vTABA, vTABS, vSCW, vSCR, vSTO = 2, 3, 4, 5, 1
    vN = 14
    vN1 = 15
    e(f"""
    s_waitcnt vmcnt(0)
    """)
    vm.clear()
    stamp(5)
    e(f"""
    v_mov_b32 {vr(vO)}, {vr(vXC)}
    v_and_b32 {vr(vO+1)}, 15, v0
    v_lshlrev_b32 {vr(vTABA)}, 1, {vr(vO+1)}
    v_lshrrev_b32 {vr(vO+2)}, 3, v0
    v_lshlrev_b32 {vr(vTABS)}, 1, {vr(vO+2)}
    s_lshl_b32 {sr(sT0)}, {sr(sM4)}, 11
    v_and_b32 {vr(vO+3)}, 7, v0
    v_lshrrev_b32 {vr(vO+4)}, 5, v0
    v_xor_b32 {vr(vO+4)}, {vr(vO+4)}, {vr(vO+3)}
    v_lshlrev_b32 {vr(vO+4)}, 4, {vr(vO+4)}
    v_lshl_or_b32 {vr(vO+4)}, {vr(vO+1)}, 7, {vr(vO+4)}
    v_bfe_u32 {vr(vO+5)}, v0, 4, 1
    v_lshl_or_b32 {vr(vO+4)}, {vr(vO+5)}, 3, {vr(vO+4)}
    v_or_b32 {vr(vSCW)}, {sr(sT0)}, {vr(vO+4)}
    v_xor_b32 {vr(vO+4)}, {vr(vO+2)}, {vr(vO+3)}
    v_lshlrev_b32 {vr(vO+4)}, 4, {vr(vO+4)}
    v_lshl_or_b32 {vr(vO+4)}, {vr(vO+2)}, 7, {vr(vO+4)}
    v_or_b32 {vr(vSCR)}, {sr(sT0)}, {vr(vO+4)}
    s_lshl_b32 {sr(sT0)}, {sr(sM4)}, 7
    v_lshlrev_b32 {vr(vO+3)}, 4, {vr(vO+3)}
    v_or_b32 {vr(vSTO)}, {sr(sT0)}, {vr(vO+3)}
    v_mov_b32 v0, {vr(vO)}
    s_lshl_b32 {sr(sTILE)}, {sr(sNN)}, 1
    s_mov_b32 {sr(sT1)}, 0xffff
L_tile:
    """)
    vXC = 0
    for s in range(4):
        rd_w(vW + 16 * s, s)
    e(f"""
    v_cmp_gt_i32 {sr(sVAL,2)}, {sr(sTILE)}, {vr(vTABA)}
L_tile_wait:
    {SPIN}
    ds_read_u16 {vr(vN)}, {vr(vTABA)} offset:{TAB}
    s_waitcnt lgkmcnt(0)
    v_cmp_eq_u32 vcc, {sr(sT1)}, {vr(vN)}
    v_lshl_add_u32 {vr(vXA)}, {vr(vN)}, 9, {vr(vXC)}
    s_and_b64 vcc, vcc, {sr(sVAL,2)}
    s_cbranch_scc1 L_tile_wait
    v_xor_b32 {vr(vXA+1)}, 64, {vr(vXA)}
    v_xor_b32 {vr(vXA+2)}, 128, {vr(vXA)}
    v_xor_b32 {vr(vXA+3)}, 192, {vr(vXA)}
    """)
    for s in range(8):
        e(f"ds_read_b128 {vr(vO+4*s,4)}, {vr(vXA+(s&3))} offset:{(s>>2)*256}")
    e(f"""
    ds_read_u16 {vr(vN)}, {vr(vTABS)} offset:{TAB}
    ds_read_u16 {vr(vN1)}, {vr(vTABS)} offset:{TAB+16}
    """)
    if cfg.stamps:
        e(f"""
        s_mov_b64 {sr(STAMP0+12,2)}, {sr(STAMP0+14,2)}
        s_mov_b64 {sr(STAMP0+14,2)}, {sr(STAMP0+16,2)}
        s_memrealtime {sr(STAMP0+16,2)}
        s_waitcnt lgkmcnt(0)
        """)
    lg = ["o0", "o1", "o2", "o3", "o4", "o5", "o6", "o7", "n", "n"]
    def wait_lg(tag):
        if tag not in lg:
            return
        last = max(i for i, t in enumerate(lg) if t == tag)
        e(f"s_waitcnt lgkmcnt({min(15, len(lg)-1-last)})")
        del lg[:last + 1]
    for s in range(8):
        wait_lg(f"o{s}")
        wait_lg(f"w{s}")
        for c in range(4):
            a = vA2 + 4 * c
            w = vW + 16 * (s & 3) + 4 * c
            e(f"v_mfma_f32_16x16x32_bf16 {vr(a,4)}, {vr(w,4)}, {vr(vO+4*s,4)}, {vr(a,4) if s else '0'}")
            if s < 4:
                for hh in range(2):
                    e(f"ds_read_b64_tr_b16 {vr(w+2*hh,2)}, {vr(vTR+c)} offset:{(s+4)*4096+hh*512}")
                    lg.append(f"w{s+4}")
    e(f"""
    v_lshl_add_u32 {vr(vN)}, {vr(vN)}, 9, {vr(vSTO)}
    v_lshl_add_u32 {vr(vN1)}, {vr(vN1)}, 9, {vr(vSTO)}
    v_xor_b32 {vr(vXA+1)}, 32, {vr(vSCW)}
    v_xor_b32 {vr(vXA+2)}, 64, {vr(vSCW)}
    v_xor_b32 {vr(vXA+3)}, 96, {vr(vSCW)}
    v_add_u32 {vr(vTABA)}, 32, {vr(vTABA)}
    v_add_u32 {vr(vTABS)}, 32, {vr(vTABS)}
    s_nop 0
    """)
    for c in range(4):
        a = vA2 + 4 * c
        e(f"v_cvt_pk_bf16_f32 {vr(a)}, {vr(a)}, {vr(a+1)}")
        e(f"v_cvt_pk_bf16_f32 {vr(a+1)}, {vr(a+2)}, {vr(a+3)}")
        e(f"ds_write_b64 {vr(vSCW if c == 0 else vXA+c)}, {vr(a,2)} offset:{STG}")
    e(f"""
    ds_read_b128 {vr(vO,4)}, {vr(vSCR)} offset:{STG}
    ds_read_b128 {vr(vO+4,4)}, {vr(vSCR)} offset:{STG+1024}
    v_readfirstlane_b32 {sr(sT0)}, {vr(vTABA)}
    s_waitcnt lgkmcnt(1)
    buffer_store_dwordx4 {vr(vO,4)}, {vr(vN)}, {sr(SO,4)}, {sr(sXO)} offen {cfg.out_pol}
    s_waitcnt lgkmcnt(0)
    buffer_store_dwordx4 {vr(vO+4,4)}, {vr(vN1)}, {sr(SO,4)}, {sr(sXO)} offen {cfg.out_pol}
    s_cmp_lt_u32 {sr(sT0)}, 96
    s_cbranch_scc1 L_tile
    """)
    stamp(9)
    stamp_flush(vO + 8)
    e("""
L_end:
    s_endpgm
    """)

header()
prologue()
gather()
matrix()
footer()
open(sys.argv[1], "w").write("\n".join(out) + "\n")
```

```python
import sys

KNAME = "standalone__kernel_systems_refs_featgraph__graph_kernel"

class Cfg:
    stamps = False
    force_slow = False
    pref = 1
    wq_ahead = 2
    out_pol = "sc0 sc1"
    prio_g = 1
    pad = 0

cfg = Cfg()
for a in sys.argv[2:]:
    k, v = a.split("=", 1)
    old = getattr(cfg, k)
    if isinstance(old, bool):
        v = v not in ("0", "False")
    elif isinstance(old, int):
        v = int(v)
    setattr(cfg, k, v)

N, E = 10000, 160000
NWG = 256
STG = 0
LIST = 8192
LROW = 92
LCAP = 44
PCNT = LIST + 40 * LROW
TAB = PCNT + 256
FLG = TAB + 96
F_TICK, F_CDONE, F_QSYNC, F_QRDY, F_OVF = FLG, FLG + 4, FLG + 8, FLG + 12, FLG + 16
XQO = 12288
WB = 32768
LDS_BYTES = 163840
WS_SLOTS = 4096
WS_STAMP = WS_SLOTS + NWG * 8192
WS_BYTES = WS_STAMP + (NWG * 16 * 16 * 8 if True else 0)
TAGSTEP = 0x5A700000

out = []
def e(s=""):
    for line in s.split("\n"):
        line = line.strip()
        if not line:
            continue
        if line.endswith(":"):
            out.append(line)
        else:
            out.append("    " + line)

def vr(a, n=1):
    return f"v{a}" if n == 1 else f"v[{a}:{a+n-1}]"
def sr(a, n=1):
    return f"s{a}" if n == 1 else f"s[{a}:{a+n-1}]"

sWG, sWAVE, sSTART, sNN = 2, 3, 4, 5
sT0, sT1 = 6, 7
SX, SA, SB, SC = 8, 12, 16, 20
STAMP0 = 64
SST = 96
sBND = 60
SPIN = f"s_add_u32 s{sBND}, s{sBND}, 128\ns_cbranch_scc1 L_end"

def stamp(i):
    if cfg.stamps:
        e(f"s_memrealtime {sr(STAMP0+2*i,2)}")

def stamp_flush(vtmp):
    if not cfg.stamps:
        return
    e(f"""
    s_waitcnt vmcnt(0) lgkmcnt(0)
    s_memrealtime {sr(STAMP0+30,2)}
    s_load_dwordx2 {sr(SST,2)}, s[0:1], 56
    s_mov_b32 {sr(SST+2)}, {WS_BYTES}
    s_mov_b32 {sr(SST+3)}, 0x20000
    s_mov_b64 exec, -1
    s_lshl_b32 {sr(sT0)}, {sr(sWG)}, 4
    s_add_u32 {sr(sT0)}, {sr(sT0)}, {sr(sWAVE)}
    s_lshl_b32 {sr(sT0)}, {sr(sT0)}, 7
    s_add_u32 {sr(sT0)}, {sr(sT0)}, {WS_STAMP}
    v_mov_b32 {vr(vtmp+1)}, 0
    s_waitcnt lgkmcnt(0)
    """)
    for i in range(32):
        e(f"v_mov_b32 {vr(vtmp)}, {sr(STAMP0+i)}")
        e(f"buffer_store_dword {vr(vtmp)}, {vr(vtmp+1)}, {sr(SST,4)}, {sr(sT0)} offen offset:{4*i}")
        e("s_waitcnt vmcnt(0)")

def header():
    out.append(f"""; Specialised for N=10000 nodes, E=160000 edges, D=256.
; @launch grid=({NWG},1,1) block=(1024,1,1) lds={LDS_BYTES}
.amdgcn_target "amdgcn-amd-amdhsa--gfx950"
.text
.globl {KNAME}
.p2align 8
.type {KNAME},@function
{KNAME}:""")

def footer():
    out.append(f""".section .rodata,"a"
.p2align 6
.amdhsa_kernel {KNAME}
  .amdhsa_next_free_vgpr 128
  .amdhsa_next_free_sgpr 102
  .amdhsa_accum_offset 128
  .amdhsa_group_segment_fixed_size 0
  .amdhsa_kernarg_size 64
  .amdhsa_user_sgpr_count 2
  .amdhsa_user_sgpr_kernarg_segment_ptr 1
  .amdhsa_system_sgpr_workgroup_id_x 1
  .amdhsa_float_denorm_mode_32 3
.end_amdhsa_kernel""")

def prologue():
    e(f"""
    s_cmp_ge_u32 s2, {NWG}
    s_cbranch_scc1 L_end
    v_readfirstlane_b32 {sr(sWAVE)}, v0
    s_load_dwordx2 {sr(SX,2)}, s[0:1], 0
    """)
    if cfg.stamps:
        for i in range(32):
            e(f"s_mov_b32 {sr(STAMP0+i)}, 0")
    stamp(0)
    if cfg.pad:
        e("s_memrealtime s[62:63]")
    e(f"""
    s_mul_i32 {sr(sT0)}, s2, 625
    s_add_u32 {sr(sSTART)}, {sr(sT0)}, 15
    s_add_u32 {sr(sNN)}, {sr(sT0)}, 640
    s_lshr_b32 {sr(sSTART)}, {sr(sSTART)}, 4
    s_lshr_b32 {sr(sNN)}, {sr(sNN)}, 4
    s_sub_u32 {sr(sNN)}, {sr(sNN)}, {sr(sSTART)}
    s_mov_b32 {sr(sBND)}, 0
    s_mov_b32 {sr(SX+2)}, {N*512}
    s_mov_b32 {sr(SX+3)}, 0x20000
    s_mov_b32 {sr(SA+3)}, 0x20000
    s_mov_b32 {sr(SB+3)}, 0x20000
    s_mov_b32 {sr(SC+3)}, 0x20000
    s_lshr_b32 {sr(sWAVE)}, {sr(sWAVE)}, 6
    s_cmp_ge_u32 {sr(sWAVE)}, 12
    s_cbranch_scc1 L_matrix
    """)

def gather():
    SS, SD, SW = SA, SB, SC
    sGRP, sCH, sEOFF = 24, 25, 26
    sEP = 27
    sK = [28, 29, 30, 31]
    sM = [32, 34, 36, 38]
    sEX = 40
    sNODE, sCNT, sNS, sMORE, sSLOT, sNEXT, sQOK, sOVF, sSPIN = 42, 43, 44, 45, 46, 47, 48, 49, 50
    sLB, sSCAN, sGN = 51, 52, 53
    sC1, sC2 = 54, 55
    DATA = 64
    vQ = 8
    vACC = 16
    vA = 20
    vP = 28
    vL = 32
    vCNT, vTK, vTA, vTB, vU, vW = 40, 41, 42, 43, 44, 45
    vL16, vG2, vM0, vM1, vIDX, vOOF, vONE, vZ = 46, 47, 48, 49, 50, 51, 52, 53
    vT = 54
    vTID = 0
    vD, vS, vUu, vCa, vRec, vSa, vPos = 64, 68, 72, 76, 80, 84, 88
    vG = 92
    vST, vPO = 96, 97
    vK, vNEG = 98, 99

    e(f"""
    s_load_dwordx2 {sr(SS,2)}, s[0:1], 8
    s_load_dwordx2 {sr(SD,2)}, s[0:1], 16
    s_load_dwordx2 {sr(SW,2)}, s[0:1], 56
    s_setprio {cfg.prio_g}
    v_mov_b32 v4, -1
    v_mov_b32 v5, -1
    v_mov_b32 v6, -1
    v_mov_b32 v7, -1
    v_lshlrev_b32 v1, 4, v0
    ds_write_b128 v1, v[4:7]
    s_mov_b32 {sr(SS+2)}, {E*4}
    s_mov_b32 {sr(SD+2)}, {E*4}
    s_mov_b32 {sr(SW+2)}, {WS_STAMP}
    s_lshr_b32 {sr(sGRP)}, s2, 6
    s_and_b32 {sr(sCH)}, s2, 63
    s_mul_i32 {sr(sEOFF)}, {sr(sCH)}, 10000
    v_cmp_gt_u32 vcc, 625, v0
    s_lshl_b32 {sr(sT0)}, {sr(sGRP)}, 8
    s_mov_b64 {sr(sEX,2)}, vcc
    s_cmp_ge_u32 {sr(sWAVE)}, 10
    s_waitcnt lgkmcnt(0)
    s_cbranch_scc1 L_g_noload
    s_mov_b64 exec, {sr(sEX,2)}
    buffer_load_dwordx4 {vr(vD,4)}, v1, {sr(SD,4)}, {sr(sEOFF)} offen
    buffer_load_dwordx4 {vr(vS,4)}, v1, {sr(SS,4)}, {sr(sEOFF)} offen
    s_mov_b64 exec, -1
L_g_noload:
    s_load_dword {sr(sEP)}, {sr(SW,2)}, {sr(sT0)}
    s_barrier
    """)
    stamp(1)
    e(f"""
    v_mov_b32 {vr(vONE)}, 1
    v_mov_b32 {vr(vZ)}, 0
    v_mov_b32 {vr(vK)}, 0x68db9
    s_lshl_b32 {sr(sT0)}, {sr(sGRP)}, 30
    s_sub_u32 {sr(sT0)}, 0, {sr(sT0)}
    v_mov_b32 {vr(vNEG)}, {sr(sT0)}
    v_and_b32 v2, 15, v0
    v_bfe_u32 v3, v0, 4, 2
    v_lshlrev_b32 {vr(vL16)}, 4, v2
    v_lshlrev_b32 {vr(vG2)}, 1, v3
    v_lshrrev_b32 v4, 1, v3
    v_and_b32 v5, 1, v3
    v_lshl_or_b32 {vr(vOOF)}, v4, 8, {vr(vL16)}
    v_lshl_or_b32 {vr(vOOF)}, v5, 3, {vr(vOOF)}
    v_lshrrev_b32 v5, 2, v2
    v_lshlrev_b32 v4, 1, v4
    v_mov_b32 v6, 0xffff
    v_cmp_eq_u32 vcc, v4, v5
    v_or_b32 v4, 1, v4
    v_and_b32 v7, 3, v0
    v_cndmask_b32 {vr(vM0)}, 0, v6, vcc
    v_cmp_eq_u32 vcc, v4, v5
    v_xor_b32 v4, 2, v7
    v_lshl_or_b32 v7, v4, 2, v7
    v_cndmask_b32 {vr(vM1)}, 0, v6, vcc
    v_mul_u32_u24 {vr(vIDX)}, 0x1111, v7
    v_mov_b32 {vr(vACC)}, 0
    v_mov_b32 {vr(vACC+1)}, 0
    v_mov_b32 {vr(vACC+2)}, 0
    v_mov_b32 {vr(vACC+3)}, 0
    """)
    e(f"""
    v_lshrrev_b32 v2, 3, v0
    v_add_u32 v3, {sr(sCH)}, v2
    v_and_b32 v3, 63, v3
    v_lshlrev_b32 v2, 13, v2
    v_lshl_or_b32 v2, v3, 7, v2
    v_and_b32 v3, 0x70, v1
    v_or_b32 {vr(vST)}, v2, v3
    s_lshl_b32 {sr(sC1)}, {sr(sGRP)}, 19
    s_add_u32 {sr(sC1)}, {sr(sC1)}, {WS_SLOTS}
    s_lshl_b32 {sr(sC2)}, s2, 13
    s_add_u32 {sr(sC2)}, {sr(sC2)}, {WS_SLOTS}
    s_mov_b32 {sr(sQOK)}, 0
    s_mov_b32 {sr(sMORE)}, 0
    s_mov_b32 {sr(sNODE)}, {sr(sWAVE)}
    s_cmp_ge_u32 {sr(sWAVE)}, 10
    s_cbranch_scc1 L_g_b1
    s_mov_b64 exec, {sr(sEX,2)}
    s_mov_b32 {sr(sT0)}, 0x40000000
    s_waitcnt vmcnt(1)
    """)
    stamp(2)
    for i in range(4):
        e(f"v_mad_u32_u24 {vr(vUu+i)}, {vr(vD+i)}, {vr(vK)}, {vr(vNEG)}")
    for i in range(4):
        e(f"v_cmp_gt_u32 {sr(sM[i],2)}, {sr(sT0)}, {vr(vUu+i)}")
        e(f"v_bfe_u32 {vr(vUu+i)}, {vr(vUu+i)}, 24, 6")
    for i in range(4):
        e(f"v_lshlrev_b32 {vr(vCa+i)}, 2, {vr(vUu+i)}")
    for i in range(4):
        e(f"s_mov_b64 exec, {sr(sM[i],2)}")
        e(f"ds_add_rtn_u32 {vr(vPos+i)}, {vr(vCa+i)}, {vr(vONE)} offset:{PCNT}")
    e(f"s_mov_b64 exec, {sr(sEX,2)}")
    for i in range(4):
        e(f"v_or_b32 {vr(vD+i)}, 0xffffffc0, {vr(vD+i)}")
        e(f"v_lshlrev_b32 {vr(vSa+i)}, 7, {vr(vUu+i)}")
    e("s_waitcnt vmcnt(0)")
    for i in range(4):
        e(f"v_lshl_or_b32 {vr(vRec+i)}, {vr(vD+i)}, 14, {vr(vS+i)}")
    e("s_waitcnt lgkmcnt(0)")
    for i in range(4):
        e(f"v_min_i32 {vr(vPos+i)}, 30, {vr(vPos+i)}")
    for i in range(4):
        e(f"v_lshl_add_u32 {vr(vSa+i)}, {vr(vPos+i)}, 2, {vr(vSa+i)}")
    for i in range(4):
        e(f"v_add_u32 {vr(vSa+i)}, {STG+4}, {vr(vSa+i)}")
    for i in range(4):
        e(f"s_mov_b64 exec, {sr(sM[i],2)}")
        e(f"ds_write_b32 {vr(vSa+i)}, {vr(vRec+i)}")
    e(f"""
    s_mov_b64 exec, -1
L_g_b1:
    s_waitcnt lgkmcnt(0)
    s_barrier
    """)
    stamp(3)
    e(f"""
    s_cmp_ge_u32 {sr(sWAVE)}, 8
    s_cbranch_scc1 L_g_wait_lists
    ds_read_b128 {vr(vG,4)}, v1 offset:{STG}
    s_add_u32 {sr(sEP)}, {sr(sEP)}, 0x100000
    s_and_b32 {sr(sEP)}, {sr(sEP)}, 0xfff00000
    s_xor_b32 {sr(sK[0])}, {sr(sEP)}, 0xfff00000
    s_add_u32 {sr(sK[1])}, {sr(sK[0])}, {hex(TAGSTEP)}
    s_add_u32 {sr(sK[2])}, {sr(sK[1])}, {hex(TAGSTEP)}
    s_add_u32 {sr(sK[3])}, {sr(sK[2])}, {hex(TAGSTEP)}
    s_mov_b32 {sr(sSPIN)}, 0
    s_waitcnt lgkmcnt(0)
    """)
    for i in range(4):
        e(f"v_xor_b32 {vr(vG+i)}, {sr(sK[i])}, {vr(vG+i)}")
    e(f"""
    buffer_store_dwordx4 {vr(vG,4)}, {vr(vST)}, {sr(SW,4)}, {sr(sC1)} offen sc0 sc1
    s_mov_b32 {sr(sT1)}, 0xfff00000
L_g_poll:
    buffer_load_dwordx4 {vr(vD,4)}, v1, {sr(SW,4)}, {sr(sC2)} offen sc0 sc1
    s_add_u32 {sr(sSPIN)}, {sr(sSPIN)}, 1
    s_cmp_gt_u32 {sr(sSPIN)}, 0x40000
    s_cbranch_scc1 L_g_timeout
    s_waitcnt vmcnt(0)
    """)
    for i in range(4):
        e(f"v_xor_b32 {vr(vD+i)}, {sr(sK[i])}, {vr(vD+i)}")
    e(f"""
    v_and_b32 {vr(vS)}, {vr(vD)}, {vr(vD+1)}
    v_bitop3_b32 {vr(vS)}, {vr(vS)}, {vr(vD+2)}, {vr(vD+3)} bitop3:0x80
    v_cmp_gt_u32 vcc, {sr(sT1)}, {vr(vS)}
    s_and_b64 exec, vcc, vcc
    s_cbranch_scc1 L_g_poll
    s_mov_b64 exec, -1
    """)
    stamp(4)
    e(f"s_movk_i32 {sr(sT0)}, 0x3fff")
    for i in range(4):
        e(f"v_lshrrev_b32 {vr(vUu+i)}, 14, {vr(vD+i)}")
        e(f"v_and_b32 {vr(vS+i)}, {sr(sT0)}, {vr(vD+i)}")
    for i in range(4):
        e(f"v_subrev_u32 {vr(vUu+i)}, {sr(sSTART)}, {vr(vUu+i)}")
        e(f"v_cmp_ne_u32 {sr(sM[i],2)}, {sr(sT0)}, {vr(vS+i)}")
    for i in range(4):
        e(f"v_and_b32 {vr(vUu+i)}, 63, {vr(vUu+i)}")
    for i in range(4):
        e(f"v_mul_u32_u24 {vr(vCa+i)}, {LROW}, {vr(vUu+i)}")
    for i in range(4):
        e(f"s_mov_b64 exec, {sr(sM[i],2)}")
        e(f"ds_add_rtn_u32 {vr(vPos+i)}, {vr(vCa+i)}, {vr(vONE)} offset:{LIST}")
    e(f"""
    s_mov_b32 {sr(sT0)}, 0x80808080
    s_mov_b32 {sr(sT1)}, 0x80808080
    s_and_b64 exec, {sr(sM[3],2)}, {sr(sT0,2)}
    s_cbranch_execz L_g_noovf
    ds_write_b32 {vr(vZ)}, {vr(vONE)} offset:{F_OVF}
L_g_noovf:
    s_mov_b64 exec, -1
    """)
    for i in range(4):
        e(f"v_add_u32 {vr(vCa+i)}, {LIST+6}, {vr(vCa+i)}")
    e("s_waitcnt lgkmcnt(0)")
    for i in range(4):
        e(f"v_min_i32 {vr(vPos+i)}, {LCAP-2}, {vr(vPos+i)}")
    for i in range(4):
        e(f"v_lshl_add_u32 {vr(vCa+i)}, {vr(vPos+i)}, 1, {vr(vCa+i)}")
    for i in range(4):
        e(f"s_mov_b64 exec, {sr(sM[i],2)}")
        e(f"ds_write_b16 {vr(vCa+i)}, {vr(vS+i)}")
    e(f"""
L_g_cdone:
    s_mov_b64 exec, 1
    ds_add_u32 {vr(vZ)}, {vr(vONE)} offset:{F_CDONE}
    s_mov_b64 exec, -1
L_g_wait_lists:
    {SPIN}
    ds_read_b32 {vr(vT)}, {vr(vZ)} offset:{F_CDONE}
    ds_read_b32 {vr(vT+1)}, {vr(vZ)} offset:{F_OVF}
    s_waitcnt lgkmcnt(0)
    v_readfirstlane_b32 {sr(sT0)}, {vr(vT)}
    v_readfirstlane_b32 {sr(sOVF)}, {vr(vT+1)}
    s_cmp_lg_u32 {sr(sT0)}, 7
    s_cbranch_scc1 L_g_wait_lists
    """)
    stamp(5)

    def read_list(snode):
        e(f"""
        s_mul_i32 {sr(sT0)}, {sr(snode)}, {LROW}
        v_add_u32 {vr(vT)}, {sr(sT0)}, {vr(vG2)}
        v_mov_b32 {vr(vT+1)}, {sr(sT0)}
        ds_read_b32 {vr(vCNT)}, {vr(vT+1)} offset:{LIST}
        """)
        for s in range(8):
            e(f"ds_read_u16 {vr(vL+7-s)}, {vr(vT)} offset:{LIST+4+8*s}")

    read_list(sNODE)
    e(f"""
    s_or_b32 {sr(sT0)}, {sr(sCH)}, {sr(sWAVE)}
    s_cmp_lg_u32 {sr(sT0)}, 0
    s_cbranch_scc1 L_node
    s_cmp_eq_u32 {sr(sOVF)}, 2
    s_cbranch_scc1 L_node
    s_lshl_b32 {sr(sT0)}, {sr(sGRP)}, 8
    v_mov_b32 {vr(vT+2)}, {sr(sEP)}
    s_mov_b64 exec, 1
    buffer_store_dword {vr(vT+2)}, {vr(vZ)}, {sr(SW,4)}, {sr(sT0)} offen sc0 sc1
    s_mov_b64 exec, -1
L_node:
    s_cmp_ge_u32 {sr(sNODE)}, {sr(sNN)}
    s_cbranch_scc1 L_g_exit
    s_waitcnt lgkmcnt(0)
    v_readfirstlane_b32 {sr(sCNT)}, {vr(vCNT)}
    s_cmp_lg_u32 {sr(sOVF)}, -1
    s_cbranch_scc1 L_slow
    """)
    if cfg.force_slow:
        e("s_branch L_slow")
    e(f"""
    s_add_u32 {sr(sNS)}, {sr(sCNT)}, 4
    s_lshr_b32 {sr(sNS)}, {sr(sNS)}, 2
    s_cmp_gt_u32 {sr(sNS)}, 8
    s_cbranch_scc1 L_big
L_chunk:
    """)
    order = [4, 5, 3, 6, 7, 2, 1, 0]
    def ladder(prefix, done):
        for n in order:
            e(f"s_cmp_eq_u32 {sr(sNS)}, {n}")
            e(f"s_cbranch_scc1 {prefix}{8-n}" if n else f"s_cbranch_scc1 {done}")
    ladder("L_iss", "L_issued")
    for b in range(8):
        d = DATA + 8 * b
        e(f"""
L_iss{b}:
        v_lshl_or_b32 {vr(d+4)}, {vr(vL+b)}, 9, {vr(vL16)}
        buffer_load_dwordx4 {vr(d,4)}, {vr(d+4)}, {sr(SX,4)}, 0 offen
        buffer_load_dwordx4 {vr(d+4,4)}, {vr(d+4)}, {sr(SX,4)}, 0 offen offset:256
        """)
    e(f"""
L_issued:
    s_cmp_lg_u32 {sr(sQOK)}, 0
    s_cbranch_scc1 L_qok
L_qwait:
    {SPIN}
    ds_read_b32 {vr(vT)}, {vr(vZ)} offset:{F_QRDY}
    s_waitcnt lgkmcnt(0)
    v_readfirstlane_b32 {sr(sT0)}, {vr(vT)}
    s_cmp_lg_u32 {sr(sT0)}, 3
    s_cbranch_scc1 L_qwait
    s_mov_b32 {sr(sQOK)}, 1
    """)
    stamp(6)
    e(f"""
L_qok:
    s_lshl_b32 {sr(sLB)}, {sr(sNODE)}, 9
    s_add_u32 {sr(sLB)}, {sr(sLB)}, {XQO}
    s_and_b32 {sr(sT0)}, {sr(sNODE)}, 15
    s_lshl_b32 {sr(sT0)}, {sr(sT0)}, 4
    s_or_b32 {sr(sT0)}, {sr(sT0)}, {sr(sLB)}
    v_xor_b32 {vr(vT+2)}, {sr(sT0)}, {vr(vL16)}
    s_cmp_lg_u32 {sr(sMORE)}, 0
    s_cbranch_scc1 L_nohook
    s_mov_b64 exec, 1
    ds_add_rtn_u32 {vr(vTK)}, {vr(vZ)}, {vr(vONE)} offset:{F_TICK}
    s_mov_b64 exec, -1
    ds_read_b128 {vr(vQ,4)}, {vr(vT+2)}
    ds_read_b128 {vr(vQ+4,4)}, {vr(vT+2)} offset:256
    s_waitcnt lgkmcnt(2)
    v_readfirstlane_b32 {sr(sSLOT)}, {vr(vTK)}
    s_add_u32 {sr(sNEXT)}, {sr(sSLOT)}, 13
    s_add_u32 {sr(sSLOT)}, {sr(sSLOT)}, 1
    """)
    read_list(sNEXT)
    e(f"""
    s_waitcnt lgkmcnt(9)
L_hooked:
    """)
    ladder("L_dot", "L_chunk_done")

    QUAD = [0, 2, 1, 3]
    def dot(b):
        d = DATA + 8 * b
        p = vP + (b & 3)
        e(f"L_dot{b}:")
        e(f"s_waitcnt vmcnt({2*(7-b)+1})")
        for j in range(8):
            if j == 4:
                e(f"s_waitcnt vmcnt({2*(7-b)})")
            e(f"v_dot2_f32_bf16 {vr(p)}, {vr(d+j)}, {vr(vQ+j)}, {vr(p) if j else '0'}")
    def reduce_sig():
        p = vP
        F = "row_mask:0xf"
        e(f"""
        s_nop 2
        v_add_f32_dpp {vr(vU)}, {vr(p)}, {vr(p)} row_ror:8 {F} bank_mask:0xf
        v_add_f32_dpp {vr(vW)}, {vr(p+2)}, {vr(p+2)} row_ror:8 {F} bank_mask:0xf
        v_add_f32_dpp {vr(vU)}, {vr(p+1)}, {vr(p+1)} row_ror:8 {F} bank_mask:0xc
        v_add_f32_dpp {vr(vW)}, {vr(p+3)}, {vr(p+3)} row_ror:8 {F} bank_mask:0xc
        s_nop 0
        v_add_f32_dpp {vr(vTA)}, {vr(vU)}, {vr(vU)} row_half_mirror {F} bank_mask:0xf
        v_add_f32_dpp {vr(vTA)}, {vr(vW)}, {vr(vW)} row_half_mirror {F} bank_mask:0xa
        s_nop 1
        v_add_f32_dpp {vr(vU)}, {vr(vTA)}, {vr(vTA)} quad_perm:[1,0,3,2] {F} bank_mask:0xf
        s_nop 1
        v_add_f32_dpp {vr(vW)}, {vr(vU)}, {vr(vU)} quad_perm:[2,3,0,1] {F} bank_mask:0xf
        v_mul_f32 {vr(vW)}, 0xbdb8aa3b, {vr(vW)}
        v_exp_f32 {vr(vW)}, {vr(vW)}
        s_nop 0
        v_add_f32 {vr(vW)}, 1.0, {vr(vW)}
        v_rcp_f32 {vr(vW)}, {vr(vW)}
        s_nop 0
        v_cvt_pk_bf16_f32 {vr(vTA)}, {vr(vW)}, {vr(vW)}
        v_cvt_pk_bf16_f32 {vr(vTB)}, {vr(vW)}, {vr(vW)}
        s_nop 1
        v_permlane32_swap_b32 {vr(vTA)}, {vr(vTB)}
        s_nop 1
        v_permlane16_swap_b32 {vr(vTA)}, {vr(vTB)}
        """)
    def pv(b):
        d = DATA + 8 * b
        a = vA + 4 * (b & 1)
        bc = 4 * QUAD[b & 3]
        F = f"row_newbcast:{bc} row_mask:0xf bank_mask:0xf"
        e(f"""
L_pv{b}:
        v_and_b32_dpp {vr(a)}, {vr(vTA)}, {vr(vM0)} {F}
        v_and_b32_dpp {vr(a+1)}, {vr(vTA)}, {vr(vM1)} {F}
        v_and_b32_dpp {vr(a+2)}, {vr(vTB)}, {vr(vM0)} {F}
        v_and_b32_dpp {vr(a+3)}, {vr(vTB)}, {vr(vM1)} {F}
        s_nop 1
        v_smfmac_f32_16x16x64_bf16 {vr(vACC,4)}, {vr(a,4)}, {vr(d,8)}, {vr(vIDX)}
        """)
    for b in range(4):
        dot(b)
    reduce_sig()
    for n in (5, 6, 7):
        e(f"s_cmp_eq_u32 {sr(sNS)}, {n}")
        e(f"s_cbranch_scc1 L_pv{8-n}")
    for b in range(4):
        pv(b)
    for b in range(4, 8):
        dot(b)
    reduce_sig()
    e(f"""
    s_cmp_lt_u32 {sr(sNS)}, 4
    s_cbranch_scc1 L_pv_short
    """)
    for b in range(4, 8):
        pv(b)
    e(f"""
L_chunk_done:
    s_cmp_lg_u32 {sr(sMORE)}, 0
    s_cbranch_scc1 L_more
    s_and_b32 {sr(sT0)}, {sr(sSLOT)}, 15
    s_lshl_b32 {sr(sT0)}, {sr(sT0)}, 4
    s_or_b32 {sr(sT0)}, {sr(sT0)}, {sr(sLB)}
    v_xor_b32 {vr(vT+2)}, {sr(sT0)}, {vr(vOOF)}
    s_lshl_b32 {sr(sT0)}, {sr(sSLOT)}, 1
    v_mov_b32 {vr(vT+3)}, {sr(sT0)}
    v_mov_b32 {vr(vT+6)}, {sr(sNODE)}
    s_mov_b32 {sr(sNODE)}, {sr(sNEXT)}
    s_nop 1
    v_cvt_pk_bf16_f32 {vr(vT+4)}, {vr(vACC)}, {vr(vACC+1)}
    v_cvt_pk_bf16_f32 {vr(vT+5)}, {vr(vACC+2)}, {vr(vACC+3)}
    v_mov_b32 {vr(vACC)}, 0
    v_mov_b32 {vr(vACC+1)}, 0
    ds_write_b64 {vr(vT+2)}, {vr(vT+4,2)}
    ds_write_b16 {vr(vT+3)}, {vr(vT+6)} offset:{TAB}
    v_mov_b32 {vr(vACC+2)}, 0
    v_mov_b32 {vr(vACC+3)}, 0
    s_branch L_node

L_pv_short:
    s_cmp_eq_u32 {sr(sNS)}, 3
    s_cbranch_scc1 L_pv5
    s_cmp_eq_u32 {sr(sNS)}, 2
    s_cbranch_scc1 L_pv6
    s_branch L_pv7

L_nohook:
    ds_read_b128 {vr(vQ,4)}, {vr(vT+2)}
    ds_read_b128 {vr(vQ+4,4)}, {vr(vT+2)} offset:256
    s_waitcnt lgkmcnt(0)
    s_branch L_hooked

L_big:
    s_cmp_ge_i32 {sr(sCNT)}, {LCAP}
    s_cbranch_scc1 L_slow
    s_sub_u32 {sr(sMORE)}, {sr(sNS)}, 8
    s_mov_b32 {sr(sNS)}, 8
    s_branch L_chunk

L_more:
    s_cmp_eq_u32 {sr(sMORE)}, -1
    s_cbranch_scc1 L_scan
    s_mov_b32 {sr(sNS)}, {sr(sMORE)}
    s_mov_b32 {sr(sMORE)}, 0
    s_mul_i32 {sr(sT0)}, {sr(sNODE)}, {LROW}
    v_add_u32 {vr(vT)}, {sr(sT0)}, {vr(vG2)}
    """)
    for s in range(3):
        e(f"ds_read_u16 {vr(vL+7-s)}, {vr(vT)} offset:{LIST+4+64+8*s}")
    e(f"""
    s_waitcnt lgkmcnt(0)
    s_branch L_chunk

L_slow:
    s_mov_b32 {sr(sMORE)}, -1
    s_mov_b32 {sr(sSCAN)}, 0
    s_add_u32 {sr(sGN)}, {sr(sNODE)}, {sr(sSTART)}
L_scan:
    s_cmp_ge_u32 {sr(sSCAN)}, {E*4}
    s_cbranch_scc1 L_scan_end
    v_and_b32 {vr(vT)}, 31, v0
    v_lshlrev_b32 {vr(vT)}, 2, {vr(vT)}
    buffer_load_dword {vr(vT+1)}, {vr(vT)}, {sr(SD,4)}, {sr(sSCAN)} offen
    buffer_load_dword {vr(vT+2)}, {vr(vT)}, {sr(SS,4)}, {sr(sSCAN)} offen
    s_add_u32 {sr(sSCAN)}, {sr(sSCAN)}, 128
    s_waitcnt vmcnt(0)
    v_cmp_eq_u32 vcc, {sr(sGN)}, {vr(vT+1)}
    s_nop 4
    s_bcnt1_i32_b32 {sr(sNS)}, vcc_lo
    s_cbranch_scc0 L_scan
    s_mul_i32 {sr(sT0)}, {sr(sNODE)}, {LROW}
    v_lshrrev_b32 {vr(vT)}, 1, {vr(vT)}
    v_add_u32 {vr(vT)}, {sr(sT0)}, {vr(vT)}
    v_mov_b32 {vr(vT+3)}, -1
    ds_write_b16 {vr(vT)}, {vr(vT+3)} offset:{LIST+4}
    v_mbcnt_lo_u32_b32 {vr(vT+4)}, vcc_lo, 0
    v_lshlrev_b32 {vr(vT+4)}, 1, {vr(vT+4)}
    v_add_u32 {vr(vT+4)}, {sr(sT0)}, {vr(vT+4)}
    s_mov_b32 exec_lo, vcc_lo
    s_mov_b32 exec_hi, 0
    ds_write_b16 {vr(vT+4)}, {vr(vT+2)} offset:{LIST+4}
    s_mov_b64 exec, -1
    s_add_u32 {sr(sNS)}, {sr(sNS)}, 3
    s_lshr_b32 {sr(sNS)}, {sr(sNS)}, 2
    v_add_u32 {vr(vT)}, {sr(sT0)}, {vr(vG2)}
    """)
    for s in range(8):
        e(f"ds_read_u16 {vr(vL+7-s)}, {vr(vT)} offset:{LIST+4+8*s}")
    e(f"""
    s_waitcnt lgkmcnt(0)
    s_branch L_chunk
L_scan_end:
    s_mov_b32 {sr(sMORE)}, 0
    s_mov_b32 {sr(sNS)}, 0
    s_branch L_chunk

L_g_timeout:
    s_waitcnt vmcnt(0)
    s_mov_b64 exec, -1
    v_mov_b32 {vr(vT)}, 2
    ds_write_b32 {vr(vZ)}, {vr(vT)} offset:{F_OVF}
    s_branch L_g_cdone

L_g_exit:
    """)
    stamp_flush(vT)
    e("s_endpgm")

def matrix():
    SQ, SV, SO = SA, SB, SC
    sM4 = 24
    sWL = 25
    sKO = 26
    sXO = 27
    sTILE = 28
    sVAL = 30
    vDA = 2
    vTR = 6
    vXA = 10
    vZ, vONE = 14, 15
    vACC = 16
    vBUF = 64
    vT = 120
    e(f"""
L_matrix:
    s_load_dwordx2 {sr(SQ,2)}, s[0:1], 24
    s_load_dwordx2 {sr(SV,2)}, s[0:1], 32
    s_load_dwordx2 {sr(SO,2)}, s[0:1], 40
    s_mov_b32 {sr(SQ+2)}, 131072
    s_mov_b32 {sr(SV+2)}, 131072
    s_mov_b32 {sr(SO+2)}, {N*512}
    s_sub_u32 {sr(sM4)}, {sr(sWAVE)}, 12
    s_lshl_b32 {sr(sWL)}, {sr(sM4)}, 15
    s_add_u32 {sr(sWL)}, {sr(sWL)}, {WB}
    v_and_b32 v0, 63, v0
    """)
    vXD = vBUF
    e(f"""
    s_mul_i32 {sr(sT0)}, {sr(sM4)}, 10
    v_lshrrev_b32 v1, 5, v0
    v_add_u32 v1, {sr(sT0)}, v1
    v_and_b32 {vr(vT)}, 31, v0
    """)
    for i in range(5):
        e(f"""
        v_add_u32 {vr(vT+1)}, {2*i}, v1
        v_and_b32 {vr(vT+2)}, 15, {vr(vT+1)}
        v_xor_b32 {vr(vT+2)}, {vr(vT)}, {vr(vT+2)}
        v_lshlrev_b32 {vr(vT+2)}, 4, {vr(vT+2)}
        v_lshl_or_b32 {vr(vXD+i)}, {vr(vT+1)}, 9, {vr(vT+2)}
        """)
    e(f"""
    v_lshrrev_b32 v1, 3, v0
    v_and_b32 {vr(vT)}, 7, v0
    v_and_b32 {vr(vT+1)}, 2, v1
    v_xor_b32 {vr(vT)}, {vr(vT)}, {vr(vT+1)}
    v_lshlrev_b32 {vr(vT)}, 4, {vr(vT)}
    v_lshl_or_b32 {vr(vT)}, v1, 9, {vr(vT)}
    s_lshl_b32 {sr(sT0)}, {sr(sM4)}, 7
    v_or_b32 {vr(vDA)}, {sr(sT0)}, {vr(vT)}
    v_xor_b32 {vr(vT)}, 64, {vr(vDA)}
    v_add_u32 {vr(vDA+1)}, {3072}, {vr(vT)}
    v_add_u32 {vr(vDA+2)}, {2*3072}, {vr(vDA)}
    v_add_u32 {vr(vDA+3)}, {3*3072}, {vr(vT)}
    s_lshl_b32 {sr(sXO)}, {sr(sSTART)}, 9
    s_mul_i32 {sr(sT0)}, {sr(sM4)}, 5120
    s_add_u32 {sr(sT0)}, {sr(sT0)}, {XQO}
    s_mov_b32 m0, {sr(sT0)}
    s_waitcnt lgkmcnt(0)
    s_barrier
    """)
    stamp(1)
    for i in range(5):
        e(f"buffer_load_dwordx4 {vr(vXD+i)}, {sr(SX,4)}, {sr(sXO)} offen lds")
        if i < 4:
            e("s_add_u32 m0, m0, 1024")
            e("s_nop 0")
    vm = ["x"] * 5

    def wdma(srd, s, tag):
        e(f"""
        s_add_u32 m0, {sr(sWL)}, {s*4096}
        s_mov_b32 {sr(sKO)}, {s*16384}
        """)
        for j in range(4):
            e(f"buffer_load_dwordx4 {vr(vDA+j)}, {sr(srd,4)}, {sr(sKO)} offen offset:{1024*j} lds")
            vm.append(tag)
    def wait_vm(tag):
        last = max(i for i, t in enumerate(vm) if t == tag)
        e(f"s_waitcnt vmcnt({len(vm)-1-last})")
        del vm[:last + 1]

    wdma(SQ, 0, "q0")
    e(f"""
    v_mov_b32 {vr(vZ)}, 0
    v_mov_b32 {vr(vONE)}, 1
    v_lshrrev_b32 v1, 4, v0
    v_and_b32 {vr(vT)}, 15, v0
    v_xor_b32 {vr(vT+1)}, v1, {vr(vT)}
    v_lshlrev_b32 {vr(vT+1)}, 4, {vr(vT+1)}
    v_add_u32 {vr(vT+7)}, {XQO}, {vr(vT+1)}
    v_lshl_add_u32 {vr(vXA)}, {vr(vT)}, 9, {vr(vT+7)}
    v_xor_b32 {vr(vXA+1)}, 64, {vr(vXA)}
    v_xor_b32 {vr(vXA+2)}, 128, {vr(vXA)}
    v_xor_b32 {vr(vXA+3)}, 192, {vr(vXA)}
    v_bfe_u32 {vr(vT+1)}, v0, 2, 2
    v_lshlrev_b32 {vr(vT+2)}, 10, v1
    v_lshl_or_b32 {vr(vT+2)}, {vr(vT+1)}, 7, {vr(vT+2)}
    v_bfe_u32 {vr(vT+1)}, v0, 3, 2
    v_lshl_or_b32 {vr(vT+2)}, {vr(vT+1)}, 5, {vr(vT+2)}
    v_and_b32 {vr(vT+1)}, 3, v0
    v_lshl_or_b32 {vr(vT+2)}, {vr(vT+1)}, 3, {vr(vT+2)}
    v_add_u32 {vr(vTR)}, {sr(sWL)}, {vr(vT+2)}
    v_xor_b32 {vr(vTR+1)}, 32, {vr(vTR)}
    v_xor_b32 {vr(vTR+2)}, 64, {vr(vTR)}
    v_xor_b32 {vr(vTR+3)}, 96, {vr(vTR)}
    """)
    vXC = vT + 7
    wait_vm("x")
    e("s_barrier")
    stamp(2)
    nxt = 1
    while nxt < min(8, 1 + cfg.wq_ahead):
        wdma(SQ, nxt, f"q{nxt}")
        nxt += 1

    def rd_w(dst, s):
        for t in range(4):
            for hh in range(2):
                e(f"ds_read_b64_tr_b16 {vr(dst+4*t+2*hh,2)}, {vr(vTR+t)} offset:{s*4096+hh*512}")
    def rd_g1(s):
        b = vBUF + 28 * (s & 1)
        for t in range(3):
            e(f"ds_read_b128 {vr(b+16+4*t,4)}, {vr(vXA+(s&3))} offset:{t*8192+(s>>2)*256}")
        rd_w(b, s)
    def prefetch():
        if cfg.pref <= 0:
            return
        e(f"""
        v_lshlrev_b32 {vr(vT)}, 7, v0
        s_mul_i32 {sr(sT0)}, {sr(sM4)}, {8192*cfg.pref}
        s_add_u32 {sr(sT0)}, {sr(sT0)}, {sr(sXO)}
        s_add_u32 {sr(sT0)}, {sr(sT0)}, {40*512}
        """)
        for i in range(cfg.pref):
            e(f"buffer_load_dword {vr(vT+1)}, {vr(vT)}, {sr(SX,4)}, {sr(sT0)} offen")
            vm.append("p")
            if i + 1 < cfg.pref:
                e(f"s_add_u32 {sr(sT0)}, {sr(sT0)}, 8192")

    wait_vm("q0")
    rd_g1(0)
    for s in range(8):
        if nxt < 8:
            wdma(SQ, nxt, f"q{nxt}")
            nxt += 1
            if nxt == 8:
                prefetch()
        if s < 7:
            wait_vm(f"q{s+1}")
            rd_g1(s + 1)
            e("s_waitcnt lgkmcnt(11)")
        else:
            e("s_waitcnt lgkmcnt(0)")
            e(f"""
            s_mov_b64 exec, 1
            ds_add_u32 {vr(vZ)}, {vr(vONE)} offset:{F_QSYNC}
            s_mov_b64 exec, -1
            s_nop 3
            """)
        b = vBUF + 28 * (s & 1)
        for t in range(3):
            for c in range(4):
                a = vACC + 16 * t + 4 * c
                e(f"v_mfma_f32_16x16x32_bf16 {vr(a,4)}, {vr(b+4*c,4)}, {vr(b+16+4*t,4)}, {vr(a,4) if s else '0'}")
    stamp(3)
    nv = 0
    while nv < 2:
        wdma(SV, nv, f"v{nv}")
        nv += 1
    vQA = vBUF
    e(f"""
    v_lshrrev_b32 v1, 5, v0
    s_lshl_b32 {sr(sT0)}, {sr(sM4)}, 3
    v_or_b32 v1, {sr(sT0)}, v1
    v_and_b32 {vr(vT)}, 15, v0
    v_xor_b32 v1, v1, {vr(vT)}
    v_lshlrev_b32 v1, 4, v1
    v_lshl_or_b32 v1, {vr(vT)}, 9, v1
    v_bfe_u32 {vr(vT+2)}, v0, 4, 1
    v_lshl_or_b32 v1, {vr(vT+2)}, 3, v1
    v_add_u32 {vr(vQA)}, {XQO}, v1
    v_xor_b32 {vr(vQA+1)}, 32, {vr(vQA)}
    v_xor_b32 {vr(vQA+2)}, 64, {vr(vQA)}
    v_xor_b32 {vr(vQA+3)}, 96, {vr(vQA)}
L_m_qsync:
    {SPIN}
    ds_read_b32 {vr(vT+3)}, {vr(vZ)} offset:{F_QSYNC}
    s_waitcnt lgkmcnt(0)
    v_readfirstlane_b32 {sr(sT0)}, {vr(vT+3)}
    s_cmp_lg_u32 {sr(sT0)}, 3
    s_cbranch_scc1 L_m_qsync
    """)
    for t in range(3):
        if t == 2:
            e("s_mov_b32 exec_lo, 0x00ff00ff")
            e("s_mov_b32 exec_hi, 0x00ff00ff")
        for c in range(4):
            a = vACC + 16 * t + 4 * c
            e(f"v_cvt_pk_bf16_f32 {vr(a)}, {vr(a)}, {vr(a+1)}")
            e(f"v_cvt_pk_bf16_f32 {vr(a+1)}, {vr(a+2)}, {vr(a+3)}")
            e(f"ds_write_b64 {vr(vQA+c)}, {vr(a,2)} offset:{t*8192}")
    e(f"""
    s_mov_b64 exec, 1
    ds_add_u32 {vr(vZ)}, {vr(vONE)} offset:{F_QRDY}
    s_mov_b64 exec, -1
    """)
    stamp(4)
    while nv < 8:
        wait_vm(f"v{nv-2}")
        wdma(SV, nv, f"v{nv}")
        nv += 1
    vW = 16
    vO = 80
    vA2 = 112
    vTABA, vTABS, vSCW, vSCR, vSTO = 2, 3, 4, 5, 1
    vN = 14
    vN1 = 15
    e(f"""
    s_waitcnt vmcnt(0)
    """)
    vm.clear()
    stamp(5)
    e(f"""
    v_mov_b32 {vr(vO)}, {vr(vXC)}
    v_and_b32 {vr(vO+1)}, 15, v0
    v_lshlrev_b32 {vr(vTABA)}, 1, {vr(vO+1)}
    v_lshrrev_b32 {vr(vO+2)}, 3, v0
    v_lshlrev_b32 {vr(vTABS)}, 1, {vr(vO+2)}
    s_lshl_b32 {sr(sT0)}, {sr(sM4)}, 11
    v_and_b32 {vr(vO+3)}, 7, v0
    v_lshrrev_b32 {vr(vO+4)}, 5, v0
    v_xor_b32 {vr(vO+4)}, {vr(vO+4)}, {vr(vO+3)}
    v_lshlrev_b32 {vr(vO+4)}, 4, {vr(vO+4)}
    v_lshl_or_b32 {vr(vO+4)}, {vr(vO+1)}, 7, {vr(vO+4)}
    v_bfe_u32 {vr(vO+5)}, v0, 4, 1
    v_lshl_or_b32 {vr(vO+4)}, {vr(vO+5)}, 3, {vr(vO+4)}
    v_or_b32 {vr(vSCW)}, {sr(sT0)}, {vr(vO+4)}
    v_xor_b32 {vr(vO+4)}, {vr(vO+2)}, {vr(vO+3)}
    v_lshlrev_b32 {vr(vO+4)}, 4, {vr(vO+4)}
    v_lshl_or_b32 {vr(vO+4)}, {vr(vO+2)}, 7, {vr(vO+4)}
    v_or_b32 {vr(vSCR)}, {sr(sT0)}, {vr(vO+4)}
    s_lshl_b32 {sr(sT0)}, {sr(sM4)}, 7
    v_lshlrev_b32 {vr(vO+3)}, 4, {vr(vO+3)}
    v_or_b32 {vr(vSTO)}, {sr(sT0)}, {vr(vO+3)}
    v_mov_b32 v0, {vr(vO)}
    s_lshl_b32 {sr(sTILE)}, {sr(sNN)}, 1
    s_mov_b32 {sr(sT1)}, 0xffff
L_tile:
    """)
    vXC = 0
    for s in range(4):
        rd_w(vW + 16 * s, s)
    e(f"""
    v_cmp_gt_i32 {sr(sVAL,2)}, {sr(sTILE)}, {vr(vTABA)}
L_tile_wait:
    {SPIN}
    ds_read_u16 {vr(vN)}, {vr(vTABA)} offset:{TAB}
    s_waitcnt lgkmcnt(0)
    v_cmp_eq_u32 vcc, {sr(sT1)}, {vr(vN)}
    v_lshl_add_u32 {vr(vXA)}, {vr(vN)}, 9, {vr(vXC)}
    s_and_b64 vcc, vcc, {sr(sVAL,2)}
    s_cbranch_scc1 L_tile_wait
    v_xor_b32 {vr(vXA+1)}, 64, {vr(vXA)}
    v_xor_b32 {vr(vXA+2)}, 128, {vr(vXA)}
    v_xor_b32 {vr(vXA+3)}, 192, {vr(vXA)}
    """)
    for s in range(8):
        e(f"ds_read_b128 {vr(vO+4*s,4)}, {vr(vXA+(s&3))} offset:{(s>>2)*256}")
    e(f"""
    ds_read_u16 {vr(vN)}, {vr(vTABS)} offset:{TAB}
    ds_read_u16 {vr(vN1)}, {vr(vTABS)} offset:{TAB+16}
    """)
    if cfg.stamps:
        e(f"""
        s_mov_b64 {sr(STAMP0+12,2)}, {sr(STAMP0+14,2)}
        s_mov_b64 {sr(STAMP0+14,2)}, {sr(STAMP0+16,2)}
        s_memrealtime {sr(STAMP0+16,2)}
        s_waitcnt lgkmcnt(0)
        """)
    lg = ["o0", "o1", "o2", "o3", "o4", "o5", "o6", "o7", "n", "n"]
    def wait_lg(tag):
        if tag not in lg:
            return
        last = max(i for i, t in enumerate(lg) if t == tag)
        e(f"s_waitcnt lgkmcnt({min(15, len(lg)-1-last)})")
        del lg[:last + 1]
    for s in range(8):
        wait_lg(f"o{s}")
        wait_lg(f"w{s}")
        for c in range(4):
            a = vA2 + 4 * c
            w = vW + 16 * (s & 3) + 4 * c
            e(f"v_mfma_f32_16x16x32_bf16 {vr(a,4)}, {vr(w,4)}, {vr(vO+4*s,4)}, {vr(a,4) if s else '0'}")
            if s < 4:
                for hh in range(2):
                    e(f"ds_read_b64_tr_b16 {vr(w+2*hh,2)}, {vr(vTR+c)} offset:{(s+4)*4096+hh*512}")
                    lg.append(f"w{s+4}")
    e(f"""
    v_lshl_add_u32 {vr(vN)}, {vr(vN)}, 9, {vr(vSTO)}
    v_lshl_add_u32 {vr(vN1)}, {vr(vN1)}, 9, {vr(vSTO)}
    v_xor_b32 {vr(vXA+1)}, 32, {vr(vSCW)}
    v_xor_b32 {vr(vXA+2)}, 64, {vr(vSCW)}
    v_xor_b32 {vr(vXA+3)}, 96, {vr(vSCW)}
    v_add_u32 {vr(vTABA)}, 32, {vr(vTABA)}
    v_add_u32 {vr(vTABS)}, 32, {vr(vTABS)}
    s_nop 0
    """)
    for c in range(4):
        a = vA2 + 4 * c
        e(f"v_cvt_pk_bf16_f32 {vr(a)}, {vr(a)}, {vr(a+1)}")
        e(f"v_cvt_pk_bf16_f32 {vr(a+1)}, {vr(a+2)}, {vr(a+3)}")
        e(f"ds_write_b64 {vr(vSCW if c == 0 else vXA+c)}, {vr(a,2)} offset:{STG}")
    e(f"""
    ds_read_b128 {vr(vO,4)}, {vr(vSCR)} offset:{STG}
    ds_read_b128 {vr(vO+4,4)}, {vr(vSCR)} offset:{STG+1024}
    v_readfirstlane_b32 {sr(sT0)}, {vr(vTABA)}
    s_waitcnt lgkmcnt(1)
    buffer_store_dwordx4 {vr(vO,4)}, {vr(vN)}, {sr(SO,4)}, {sr(sXO)} offen {cfg.out_pol}
    s_waitcnt lgkmcnt(0)
    buffer_store_dwordx4 {vr(vO+4,4)}, {vr(vN1)}, {sr(SO,4)}, {sr(sXO)} offen {cfg.out_pol}
    s_cmp_lt_u32 {sr(sT0)}, 96
    s_cbranch_scc1 L_tile
    """)
    stamp(9)
    if cfg.pad:
        e(f'''
L_pad:
        s_memrealtime s[56:57]
        s_waitcnt lgkmcnt(0)
        s_sub_u32 s56, s56, s62
        s_cmp_lt_u32 s56, {cfg.pad}
        s_cbranch_scc1 L_pad
        ''')
    stamp_flush(vO + 8)
    e("""
L_end:
    s_endpgm
    """)

header()
prologue()
gather()
matrix()
footer()
open(sys.argv[1], "w").write("\n".join(out) + "\n")
```

```python
import sys

KNAME = "standalone__kernel_systems_refs_featgraph__graph_kernel"

class Cfg:
    stamps = False
    force_slow = False
    pad = 0
    probe = ''
    probe_wg = -1
    pref = 0
    pref_at = 3
    wq_ahead = 3
    wv_early = 0
    wv_fly = 1
    out_pol = "sc0 sc1"
    st_pol = "sc1"
    ld_pol = "sc1"
    prestore = True
    poll_ack = False
    codetouch = True
    wtouch = True
    prio_g = 1
    prio_g2 = 1
    prio_m = 0
    prio_m2 = 0
    prio_m3 = 2

cfg = Cfg()
for a in sys.argv[2:]:
    k, v = a.split("=", 1)
    old = getattr(cfg, k)
    if isinstance(old, bool):
        v = v not in ("0", "False")
    elif isinstance(old, int):
        v = int(v)
    setattr(cfg, k, v)

N, E = 10000, 160000
NWG = 256
NG, NM = 8, 4
LIST = 0
STG = 8192
SSTR = 272
TAB = STG + 32 * SSTR
ONES_END = TAB + 128
PCNT = ONES_END
NCNT = PCNT + 256
FLG = NCNT + 256
F_TICK, F_PDONE, F_CDONE, F_OVF, F_XSYNC, F_QRDY = (FLG + 4 * i for i in range(6))
ZERO_END = FLG + 64
XT = 17920
QO = XT + 20480
WB = QO + 20480
WSLOTS = 6
LDS_BYTES = WB + 4 * WSLOTS * 4096
WS_SLOTS = 4096
WS_STAMP = WS_SLOTS + NWG * 8192
WS_BYTES = WS_STAMP + NWG * 16 * 128
TAGONE = 0x00400000
TAGMASK = 0xFFC00000
TAGSTEP = 0x5A400000

out = []
def e(s=""):
    for line in s.split("\n"):
        line = line.strip()
        if not line:
            continue
        if line.endswith(":"):
            out.append(line)
        else:
            out.append("    " + line)

def vr(a, n=1):
    return f"v{a}" if n == 1 else f"v[{a}:{a+n-1}]"
def sr(a, n=1):
    return f"s{a}" if n == 1 else f"s[{a}:{a+n-1}]"

sWAVE, sSTART, sNN = 3, 4, 5
sT0, sT1 = 6, 7
SX, SS, SD, SW, SQ, SV, SO = 8, 12, 16, 20, 24, 28, 32
sBND = 62
STAMP0 = 64
SPIN = f"s_add_u32 s{sBND}, s{sBND}, 128\ns_cbranch_scc1 L_end"
SDWA = "dst_sel:DWORD dst_unused:UNUSED_PAD src0_sel:DWORD"

ROLE = ["G"]
def probe_end():
    if cfg.probe and cfg.probe[0] == ROLE[0]:
        if cfg.probe_wg >= 0:
            e(f"s_cmp_lg_u32 s2, {cfg.probe_wg}\ns_cbranch_scc1 L_end")
        e(f"""
        s_waitcnt lgkmcnt(0)
        s_sub_u32 s100, s100, s98
        s_mul_i32 s100, s100, 5
        s_add_u32 s100, s100, 2000
L_probe:
        s_memrealtime s[96:97]
        s_waitcnt lgkmcnt(0)
        s_sub_u32 s96, s96, s98
        s_cmp_lt_u32 s96, s100
        s_cbranch_scc1 L_probe
        """)
def stamp(i):
    if cfg.probe == f"{ROLE[0]}{i}":
        e("s_memrealtime s[100:101]")
    if cfg.stamps:
        e(f"s_memrealtime {sr(STAMP0+2*i,2)}")

def stamp_flush(vt):
    if not cfg.stamps:
        return
    e(f"""
    s_waitcnt vmcnt(0)
    s_memrealtime {sr(STAMP0+30,2)}
    s_mov_b32 {sr(SW+2)}, {WS_BYTES}
    s_mov_b32 {sr(SW+3)}, 0x20000
    s_mov_b64 exec, -1
    s_lshl_b32 {sr(sT0)}, s2, 4
    s_add_u32 {sr(sT0)}, {sr(sT0)}, {sr(sWAVE)}
    s_lshl_b32 {sr(sT0)}, {sr(sT0)}, 7
    s_add_u32 {sr(sT0)}, {sr(sT0)}, {WS_STAMP}
    v_mbcnt_lo_u32_b32 {vr(vt+1)}, -1, 0
    v_lshlrev_b32 {vr(vt+1)}, 2, {vr(vt+1)}
    v_mov_b32 {vr(vt)}, 0
    s_waitcnt lgkmcnt(0)
    """)
    for i in range(32):
        e(f"v_writelane_b32 {vr(vt)}, {sr(STAMP0+i)}, {i}")
    e(f"""
    s_mov_b32 exec_hi, 0
    buffer_store_dword {vr(vt)}, {vr(vt+1)}, {sr(SW,4)}, {sr(sT0)} offen
    """)

def header():
    out.append(f"""; Specialised for N=10000 nodes, E=160000 edges, D=256.
; @launch grid=({NWG},1,1) block=({64*(NG+NM)},1,1) lds={LDS_BYTES}
.amdgcn_target "amdgcn-amd-amdhsa--gfx950"
.text
.globl {KNAME}
.p2align 8
.type {KNAME},@function
{KNAME}:""")

def footer():
    out.append(f""".section .rodata,"a"
.p2align 6
.amdhsa_kernel {KNAME}
  .amdhsa_next_free_vgpr 168
  .amdhsa_next_free_sgpr 102
  .amdhsa_accum_offset 168
  .amdhsa_group_segment_fixed_size 0
  .amdhsa_kernarg_size 64
  .amdhsa_user_sgpr_count 2
  .amdhsa_user_sgpr_kernarg_segment_ptr 1
  .amdhsa_system_sgpr_workgroup_id_x 1
  .amdhsa_float_denorm_mode_32 3
.end_amdhsa_kernel""")

def prologue():
    e(f"""
    s_cmp_ge_u32 s2, {NWG}
    s_cbranch_scc1 L_end
    s_load_dwordx2 {sr(SD,2)}, s[0:1], 16
    s_load_dwordx2 {sr(SS,2)}, s[0:1], 8
    s_load_dwordx2 {sr(SW,2)}, s[0:1], 56
    s_load_dwordx2 {sr(SX,2)}, s[0:1], 0
    s_load_dwordx2 {sr(SQ,2)}, s[0:1], 24
    s_load_dwordx2 {sr(SV,2)}, s[0:1], 32
    s_load_dwordx2 {sr(SO,2)}, s[0:1], 40
    v_readfirstlane_b32 {sr(sWAVE)}, v0
    """)
    if cfg.stamps:
        for i in range(16):
            e(f"s_mov_b64 {sr(STAMP0+2*i,2)}, 0")
    stamp(0)
    if cfg.pad or cfg.probe:
        e("s_memrealtime s[98:99]")
    e(f"""
    s_mul_i32 {sr(sT0)}, s2, 625
    s_add_u32 {sr(sSTART)}, {sr(sT0)}, 15
    s_add_u32 {sr(sNN)}, {sr(sT0)}, 640
    s_lshr_b32 {sr(sSTART)}, {sr(sSTART)}, 4
    s_lshr_b32 {sr(sNN)}, {sr(sNN)}, 4
    s_sub_u32 {sr(sNN)}, {sr(sNN)}, {sr(sSTART)}
    s_mov_b32 {sr(sBND)}, 0
    s_mov_b32 {sr(SX+2)}, {N*512}
    s_mov_b32 {sr(SX+3)}, 0x20000
    s_lshr_b32 {sr(sWAVE)}, {sr(sWAVE)}, 6
    s_cmp_ge_u32 {sr(sWAVE)}, {NG}
    s_cbranch_scc1 L_matrix
    """)

class G:
    sGRP, sCH, sEOFF, sEP = 36, 37, 38, 39
    sK = [40, 41, 42, 43]
    sM = [44, 46, 48, 50, 52]
    sEX = 54
    sC1, sC2, sSPIN = 56, 57, 58
    sCUR, sNXT, sN2, nCUR, nNXT, nN2, mCUR, mNXT, sSLOT = 40, 41, 42, 43, 44, 45, 46, 47, 48
    s512, sSCAN, sGN, sROWB, sLOOP = 49, 50, 51, 52, 53
    BUF = [40, 104]
    vQ, vACC, vP, vTT, vL = 8, 16, 20, 28, 32
    vL16, vLG, vM0, vM1, vIDX, vOOF, vONE, vZ = 2, 3, 4, 5, 6, 7, 36, 37
    vALL, vTK = 38, 39
    vA0, vA1 = 0, 1
    vD, vS, vU, vC, vPos = 40, 48, 56, 64, 72
    vGR = 80
    vST, vK, vNEG, vLIM, vRA, vMSK, v65 = 84, 85, 86, 87, 88, 89, 90
    vZ4 = 92
    vT = 96

def gather1():
    g = G
    e(f"s_setprio {cfg.prio_g}")
    if cfg.codetouch:
        e(f"""
        s_cmp_lg_u32 {sr(sWAVE)}, 0
        s_cbranch_scc1 L_g_notouch
        s_getpc_b64 {sr(g.sEX,2)}
L_pc:
        s_bfe_u32 {sr(sT0)}, s2, 0x20003
        s_lshl_b32 {sr(sT0)}, {sr(sT0)}, 7
        v_lshl_add_u32 {vr(g.vT)}, v0, 9, {sr(sT0)}
        v_cmp_gt_u32 vcc, L_end-L_pc, {vr(g.vT)}
        s_and_b64 exec, vcc, vcc
        global_load_dword {vr(g.vT+1)}, {vr(g.vT)}, {sr(g.sEX,2)}
        s_mov_b64 exec, -1
L_g_notouch:
        """)
    e(f"""
    v_mov_b32 v4, -1
    v_mov_b32 v5, -1
    v_mov_b32 v6, -1
    v_mov_b32 v7, -1
    v_lshlrev_b32 v1, 4, v0
    ds_write_b128 v1, v[4:7]
    ds_write_b128 v1, v[4:7] offset:8192
    s_mov_b32 {sr(SS+2)}, {E*4}
    s_mov_b32 {sr(SS+3)}, 0x20000
    s_mov_b32 {sr(SD+2)}, {E*4}
    s_mov_b32 {sr(SD+3)}, 0x20000
    s_mov_b32 {sr(SW+2)}, {WS_STAMP}
    s_mov_b32 {sr(SW+3)}, 0x20000
    s_lshr_b32 {sr(g.sGRP)}, s2, 6
    s_and_b32 {sr(g.sCH)}, s2, 63
    s_mul_i32 {sr(g.sEOFF)}, {sr(g.sCH)}, 10000
    v_lshlrev_b32 v2, 2, v0
    s_add_u32 {sr(sT1)}, {sr(g.sEOFF)}, 8192
    v_lshrrev_b32 v3, 3, v0
    v_add_u32 v8, {sr(g.sCH)}, v3
    v_and_b32 v8, 63, v8
    v_lshlrev_b32 v9, 13, v3
    v_lshl_or_b32 v8, v8, 7, v9
    v_and_b32 v9, 0x70, v1
    v_or_b32 {vr(g.vST)}, v8, v9
    s_lshl_b32 {sr(g.sC1)}, {sr(g.sGRP)}, 19
    s_add_u32 {sr(g.sC1)}, {sr(g.sC1)}, {WS_SLOTS}
    s_lshl_b32 {sr(sT0)}, {sr(g.sGRP)}, 8
    s_waitcnt lgkmcnt(0)
    buffer_load_dwordx4 {vr(g.vD,4)}, v1, {sr(SD,4)}, {sr(g.sEOFF)} offen
    buffer_load_dword {vr(g.vD+4)}, v2, {sr(SD,4)}, {sr(sT1)} offen
    buffer_load_dwordx4 {vr(g.vS,4)}, v1, {sr(SS,4)}, {sr(g.sEOFF)} offen
    buffer_load_dword {vr(g.vS+4)}, v2, {sr(SS,4)}, {sr(sT1)} offen
    s_load_dword {sr(g.sEP)}, {sr(SW,2)}, {sr(sT0)}
    """)
    if cfg.prestore:
        e(f"buffer_store_dwordx4 v[4:7], {vr(g.vST)}, {sr(SW,4)}, {sr(g.sC1)} offen {cfg.st_pol}")
    e(f"""
    s_barrier
    s_branch L_g2
    """)

def gather2():
    g = G
    ps = 1 if cfg.prestore else 0
    e("L_g2:")
    stamp(1)
    e(f"""
    v_mov_b32 {vr(g.vONE)}, 1
    v_mov_b32 {vr(g.vZ)}, 0
    v_mov_b32 {vr(g.vK)}, 0x68db9
    s_lshl_b32 {sr(sT0)}, {sr(g.sGRP)}, 30
    s_sub_u32 {sr(sT0)}, 0, {sr(sT0)}
    v_mov_b32 {vr(g.vNEG)}, {sr(sT0)}
    v_mov_b32 {vr(g.vLIM)}, 31
    v_mov_b32 {vr(g.v65)}, 65
    v_mov_b32 {vr(g.vMSK)}, 0x3fffff
    v_cmp_gt_u32 vcc, 452, v0
    v_and_b32 v8, 7, v0
    v_mul_u32_u24 v8, {SSTR}, v8
    v_lshl_add_u32 {vr(g.vRA)}, v3, 2, v8
    s_mov_b64 {sr(g.sEX,2)}, vcc
    v_and_b32 v8, 15, v0
    v_bfe_u32 v9, v0, 4, 2
    v_lshlrev_b32 {vr(g.vL16)}, 4, v8
    v_lshlrev_b32 {vr(g.vLG)}, 5, v9
    v_lshrrev_b32 v10, 1, v9
    v_and_b32 v11, 1, v9
    v_lshl_or_b32 {vr(g.vOOF)}, v10, 8, {vr(g.vL16)}
    v_lshl_or_b32 {vr(g.vOOF)}, v11, 3, {vr(g.vOOF)}
    v_lshrrev_b32 v11, 2, v8
    v_lshlrev_b32 v10, 1, v10
    v_mov_b32 v12, 0xffff
    v_cmp_eq_u32 vcc, v10, v11
    v_or_b32 v10, 1, v10
    v_and_b32 v13, 3, v0
    v_cndmask_b32 {vr(g.vM0)}, 0, v12, vcc
    v_cmp_eq_u32 vcc, v10, v11
    v_xor_b32 v10, 2, v13
    v_lshl_or_b32 v13, v10, 2, v13
    v_cndmask_b32 {vr(g.vM1)}, 0, v12, vcc
    v_mul_u32_u24 {vr(g.vIDX)}, 0x1111, v13
    v_mov_b64 {vr(g.vACC,2)}, 0
    v_mov_b64 {vr(g.vACC+2,2)}, 0
    v_and_b32 {vr(g.vALL)}, 63, v0
    v_lshlrev_b32 {vr(g.vALL)}, 2, {vr(g.vALL)}
    s_lshl_b32 {sr(g.sC2)}, s2, 13
    s_add_u32 {sr(g.sC2)}, {sr(g.sC2)}, {WS_SLOTS}
    s_mov_b32 {sr(g.sSPIN)}, 0
    s_mov_b32 {sr(sT0)}, 0x40000000
    s_movk_i32 {sr(sT1)}, {SSTR}
    s_waitcnt vmcnt({2+ps})
    """)
    stamp(2)
    for i in range(5):
        e(f"v_mad_u32_u24 {vr(g.vU+i)}, {vr(g.vD+i)}, {vr(g.vK)}, {vr(g.vNEG)}")
    for i in range(5):
        e(f"v_cmp_gt_u32 {sr(g.sM[i],2)}, {sr(sT0)}, {vr(g.vU+i)}")
        e(f"v_lshlrev_b32_sdwa {vr(g.vC+i)}, 2, {vr(g.vU+i)} {SDWA} src1_sel:BYTE_3")
    for i in range(5):
        if i < 4:
            e(f"s_mov_b64 exec, {sr(g.sM[i],2)}")
        else:
            e(f"s_and_b64 {sr(g.sM[i],2)}, {sr(g.sM[i],2)}, {sr(g.sEX,2)}")
            e(f"s_mov_b64 exec, {sr(g.sM[i],2)}")
        e(f"ds_inc_rtn_u32 {vr(g.vPos+i)}, {vr(g.vC+i)}, {vr(g.vLIM)} offset:{PCNT}")
    e(f"""
    s_mov_b64 exec, -1
    s_waitcnt vmcnt({ps})
    """)
    for i in range(5):
        e(f"v_lshl_or_b32 {vr(g.vD+i)}, {vr(g.vD+i)}, 16, {vr(g.vS+i)}")
    e("s_waitcnt lgkmcnt(0)")
    for i in range(5):
        e(f"v_mad_u32_u24 {vr(g.vC+i)}, {vr(g.vPos+i)}, {sr(sT1)}, {vr(g.vC+i)}")
    for i in range(5):
        e(f"s_mov_b64 exec, {sr(g.sM[i],2)}")
        e(f"ds_write_b32 {vr(g.vC+i)}, {vr(g.vD+i)} offset:{STG}")
    e(f"""
    s_mov_b64 exec, 1
    ds_add_u32 {vr(g.vZ)}, {vr(g.vONE)} offset:{F_PDONE}
    s_mov_b64 exec, -1
    s_add_u32 {sr(g.sEP)}, {sr(g.sEP)}, {hex(TAGONE)}
    s_and_b32 {sr(g.sEP)}, {sr(g.sEP)}, {hex(TAGMASK)}
    s_mov_b32 {sr(g.sK[0])}, {sr(g.sEP)}
    s_add_u32 {sr(g.sK[1])}, {sr(g.sK[0])}, {hex(TAGSTEP)}
    s_add_u32 {sr(g.sK[2])}, {sr(g.sK[1])}, {hex(TAGSTEP)}
    s_add_u32 {sr(g.sK[3])}, {sr(g.sK[2])}, {hex(TAGSTEP)}
L_g_psync:
    ds_read_b32 {vr(g.vT)}, {vr(g.vZ)} offset:{F_PDONE}
    """)
    for i in range(4):
        e(f"ds_read_b32 {vr(g.vGR+i)}, {vr(g.vRA)} offset:{STG+8*SSTR*i}")
    e(f"""
    {SPIN}
    s_waitcnt lgkmcnt(4)
    v_readfirstlane_b32 {sr(sT0)}, {vr(g.vT)}
    s_cmp_lg_u32 {sr(sT0)}, {NG}
    s_cbranch_scc1 L_g_psync
    s_waitcnt lgkmcnt(0)
    """)
    for i in range(4):
        e(f"v_and_or_b32 {vr(g.vGR+i)}, {vr(g.vGR+i)}, {vr(g.vMSK)}, {sr(g.sK[i])}")
    e(f"buffer_store_dwordx4 {vr(g.vGR,4)}, {vr(g.vST)}, {sr(SW,4)}, {sr(g.sC1)} offen {cfg.st_pol}")
    stamp(3)
    if cfg.poll_ack:
        e("s_waitcnt vmcnt(0)")
    e(f"""
L_g_poll:
    buffer_load_dwordx4 {vr(g.vD,4)}, v1, {sr(SW,4)}, {sr(g.sC2)} offen {cfg.ld_pol}
    s_add_u32 {sr(g.sSPIN)}, {sr(g.sSPIN)}, 0x4000
    s_cbranch_scc1 L_g_timeout
    s_waitcnt vmcnt(0)
    """)
    for i in range(4):
        e(f"v_xor_b32 {vr(g.vD+i)}, {sr(g.sK[i])}, {vr(g.vD+i)}")
    e(f"""
    v_or_b32 {vr(g.vS)}, {vr(g.vD)}, {vr(g.vD+1)}
    v_or3_b32 {vr(g.vS)}, {vr(g.vS)}, {vr(g.vD+2)}, {vr(g.vD+3)}
    v_cmp_lt_u32 vcc, {vr(g.vMSK)}, {vr(g.vS)}
    s_and_b64 exec, vcc, vcc
    s_cbranch_scc1 L_g_poll
    s_mov_b64 exec, -1
    """)
    stamp(4)
    for i in range(3):
        e(f"v_cmp_ne_u16 {sr(g.sM[i],2)}, -1, {vr(g.vD+i)}")
        if i < 2:
            e(f"v_lshlrev_b32_sdwa {vr(g.vC+i)}, 2, {vr(g.vD+i)} {SDWA} src1_sel:WORD_1")
    for i in range(2):
        e(f"s_mov_b64 exec, {sr(g.sM[i],2)}")
        e(f"ds_add_rtn_u32 {vr(g.vPos+i)}, {vr(g.vC+i)}, {vr(g.v65)} offset:{NCNT}")
    e(f"""
    s_mov_b64 exec, -1
    s_cmp_lg_u64 {sr(g.sM[2],2)}, 0
    s_cbranch_scc1 L_g_c23
L_g_c01:
    v_lshlrev_b32 {vr(g.vC)}, 5, {vr(g.vC)}
    v_lshlrev_b32 {vr(g.vC+1)}, 5, {vr(g.vC+1)}
    s_waitcnt lgkmcnt(0)
    """)
    def cwrite(ids):
        for i in ids:
            e(f"v_bfe_u32 {vr(g.vPos+i)}, {vr(g.vPos+i)}, 2, 6")
        for i in ids:
            e(f"v_lshl_add_u32 {vr(g.vC+i)}, {vr(g.vPos+i)}, 1, {vr(g.vC+i)}")
        for i in ids:
            e(f"s_mov_b64 exec, {sr(g.sM[i],2)}")
            e(f"ds_write_b16 {vr(g.vC+i)}, {vr(g.vD+i)} offset:{LIST}")
    cwrite([0, 1])
    e(f"""
L_g_cdone:
    s_mov_b64 exec, 1
    ds_add_u32 {vr(g.vZ)}, {vr(g.vONE)} offset:{F_CDONE}
    s_mov_b64 exec, -1
    s_mov_b32 {sr(g.sCUR)}, {sr(sWAVE)}
    s_add_u32 {sr(g.sNXT)}, {sr(sWAVE)}, {NG}
    s_add_u32 {sr(g.sROWB)}, {sr(sWAVE)}, {sr(sSTART)}
    s_and_b32 {sr(g.sROWB)}, {sr(g.sROWB)}, 63
    s_lshl_b32 {sr(sT1)}, {sr(g.sROWB)}, 7
    v_add_u32 {vr(g.vA0)}, {sr(sT1)}, {vr(g.vLG)}
    s_movk_i32 {sr(g.s512)}, 0x200
L_g_csync:
    ds_read_b64 {vr(g.vT,2)}, {vr(g.vZ)} offset:{F_CDONE}
    ds_read_b32 {vr(g.vT+2)}, {vr(g.vALL)} offset:{NCNT}
    ds_read_b128 {vr(g.vL,4)}, {vr(g.vA0)} offset:{LIST}
    {SPIN}
    s_waitcnt lgkmcnt(2)
    v_readfirstlane_b32 {sr(sT0)}, {vr(g.vT)}
    v_readfirstlane_b32 {sr(sT1)}, {vr(g.vT+1)}
    s_cmp_lg_u32 {sr(sT0)}, {NG}
    s_cbranch_scc1 L_g_csync
    s_waitcnt lgkmcnt(1)
    v_add_u32 {vr(g.vALL)}, 192, {vr(g.vT+2)}
    """)
    stamp(5)
    if cfg.force_slow:
        e(f"s_mov_b32 {sr(sT1)}, 1")
    e(f"""
    v_lshrrev_b32 {vr(g.vALL)}, 8, {vr(g.vALL)}
    s_cmp_lg_u32 {sr(sT1)}, 0
    s_cbranch_scc1 L_g_allslow
L_g_first:
    v_readlane_b32 {sr(g.nCUR)}, {vr(g.vALL)}, {sr(g.sROWB)}
    s_mov_b32 {sr(g.mCUR)}, 0
    s_waitcnt lgkmcnt(0)
    s_cmp_gt_u32 {sr(g.nCUR)}, 8
    s_cbranch_scc1 L_g_fix0
L_g_fixed0:
    """)

    order = [4, 5, 3, 6, 7, 2, 1, 0]
    def ladder(sn, prefix, done):
        for n in order:
            e(f"s_cmp_eq_u32 {sr(sn)}, {n}")
            e(f"s_cbranch_scc1 {prefix}{8-n}" if n else f"s_cbranch_scc1 {done}")
    def issue(sn, buf, tag):
        ladder(sn, f"L_iss{tag}_", f"L_issued{tag}")
        for b in range(8):
            d = buf + 8 * b
            s = 7 - b
            e(f"""
L_iss{tag}_{b}:
            v_mad_u32_u16 {vr(d+4)}, {vr(g.vL+(s>>1))}, {sr(g.s512)}, {vr(g.vL16)} op_sel:[{s&1},0,0,0]
            buffer_load_dwordx4 {vr(d,4)}, {vr(d+4)}, {sr(SX,4)}, 0 offen
            buffer_load_dwordx4 {vr(d+4,4)}, {vr(d+4)}, {sr(SX,4)}, 0 offen offset:256
            """)
        e(f"L_issued{tag}:")
    def read_list(snode, sn):
        e(f"""
        s_add_u32 {sr(sT0)}, {sr(snode)}, {sr(sSTART)}
        s_and_b32 {sr(sT0)}, {sr(sT0)}, 63
        v_readlane_b32 {sr(sn)}, {vr(g.vALL)}, {sr(sT0)}
        s_lshl_b32 {sr(sT0)}, {sr(sT0)}, 7
        v_add_u32 {vr(g.vA0)}, {sr(sT0)}, {vr(g.vLG)}
        ds_read_b128 {vr(g.vL,4)}, {vr(g.vA0)} offset:{LIST}
        """)
    def read_q(snode):
        e(f"""
        s_and_b32 {sr(sT0)}, {sr(snode)}, 15
        s_lshl_b32 {sr(sT1)}, {sr(snode)}, 9
        s_lshl4_add_u32 {sr(sT0)}, {sr(sT0)}, {sr(sT1)}
        v_xor_b32 {vr(g.vA1)}, {sr(sT0)}, {vr(g.vL16)}
        ds_read_b128 {vr(g.vQ,4)}, {vr(g.vA1)} offset:{QO}
        ds_read_b128 {vr(g.vQ+4,4)}, {vr(g.vA1)} offset:{QO+256}
        """)
    def fix(sn, sm, lab, back):
        e(f"""
{lab}:
        s_sub_u32 {sr(sm)}, {sr(sn)}, 8
        s_cmp_gt_u32 {sr(sn)}, 16
        s_cselect_b32 {sr(sm)}, -1, {sr(sm)}
        s_cselect_b32 {sr(sn)}, 0, 8
        s_branch {back}
        """)

    issue(g.nCUR, g.BUF[0], "F")
    stamp(6)
    e(f"s_setprio {cfg.prio_g2}")
    read_list(g.sNXT, g.nNXT)
    e(f"""
    s_mov_b32 {sr(g.mNXT)}, 0
    s_or_b32 {sr(sT0)}, {sr(g.sCH)}, {sr(sWAVE)}
    s_cbranch_scc1 L_g_noep
    s_lshl_b32 {sr(sT0)}, {sr(g.sGRP)}, 8
    v_mov_b32 {vr(g.vA1)}, {sr(g.sEP)}
    s_mov_b64 exec, 1
    buffer_store_dword {vr(g.vA1)}, {vr(g.vZ)}, {sr(SW,4)}, {sr(sT0)} offen sc0 sc1
    s_mov_b64 exec, -1
L_g_noep:
    s_cmp_gt_u32 {sr(g.nNXT)}, 8
    s_cbranch_scc1 L_g_fix1
L_g_qwait:
    ds_read_b32 {vr(g.vTK)}, {vr(g.vZ)} offset:{F_QRDY}
    """)
    read_q(g.sCUR)
    e(f"""
    {SPIN}
    s_waitcnt lgkmcnt(2)
    v_readfirstlane_b32 {sr(sT0)}, {vr(g.vTK)}
    s_cmp_lg_u32 {sr(sT0)}, {NM}
    s_cbranch_scc1 L_g_qwait
    """)
    stamp(7)

    QUAD = [0, 2, 1, 3]
    F = "row_mask:0xf"
    def red_ops(p, ta):
        a, b, c, d = p, p + 1, p + 2, p + 3
        return [
            (f"v_add_f32_dpp {vr(a)}, {vr(a)}, {vr(a)} row_ror:8 {F} bank_mask:0xf", 0),
            (f"v_add_f32_dpp {vr(c)}, {vr(c)}, {vr(c)} row_ror:8 {F} bank_mask:0xf", 0),
            (f"v_add_f32_dpp {vr(a)}, {vr(b)}, {vr(b)} row_ror:8 {F} bank_mask:0xc", 0),
            (f"v_add_f32_dpp {vr(c)}, {vr(d)}, {vr(d)} row_ror:8 {F} bank_mask:0xc", 0),
            (f"v_add_f32_dpp {vr(b)}, {vr(a)}, {vr(a)} row_half_mirror {F} bank_mask:0xf", 1),
            (f"v_add_f32_dpp {vr(b)}, {vr(c)}, {vr(c)} row_half_mirror {F} bank_mask:0xa", 0),
            (f"v_add_f32_dpp {vr(b)}, {vr(b)}, {vr(b)} quad_perm:[1,0,3,2] {F} bank_mask:0xf", 2),
            (f"v_add_f32_dpp {vr(b)}, {vr(b)}, {vr(b)} quad_perm:[2,3,0,1] {F} bank_mask:0xf", 2),
            (f"v_mul_f32 {vr(b)}, 0xbdb8aa3b, {vr(b)}", 0),
            (f"v_exp_f32 {vr(b)}, {vr(b)}", 0),
            (f"v_add_f32 {vr(b)}, 1.0, {vr(b)}", 1),
            (f"v_rcp_f32 {vr(b)}, {vr(b)}", 0),
            (f"v_cvt_pk_bf16_f32 {vr(ta)}, {vr(b)}, {vr(b)}", 1),
            (f"v_cvt_pk_bf16_f32 {vr(ta+1)}, {vr(b)}, {vr(b)}", 0),
            (f"v_permlane32_swap_b32 {vr(ta)}, {vr(ta+1)}", 2),
            (f"v_permlane16_swap_b32 {vr(ta)}, {vr(ta+1)}", 2),
        ]
    def red_single(p, ta):
        for t, w in red_ops(p, ta):
            if w:
                e(f"s_nop {w-1}")
            e(t)
    def red_dual():
        for (t0, w), (t1, _) in zip(red_ops(g.vP, g.vTT), red_ops(g.vP + 4, g.vTT + 2)):
            if w > 1:
                e(f"s_nop {w-2}")
            e(t0)
            e(t1)
    def pv_block(d, a, ta, quad):
        Fb = f"row_newbcast:{4*quad} row_mask:0xf bank_mask:0xf"
        e(f"""
        v_and_b32_dpp {vr(a)}, {vr(ta)}, {vr(g.vM0)} {Fb}
        v_and_b32_dpp {vr(a+1)}, {vr(ta)}, {vr(g.vM1)} {Fb}
        v_and_b32_dpp {vr(a+2)}, {vr(ta+1)}, {vr(g.vM0)} {Fb}
        v_and_b32_dpp {vr(a+3)}, {vr(ta+1)}, {vr(g.vM1)} {Fb}
        s_nop 1
        v_smfmac_f32_16x16x64_bf16 {vr(g.vACC,4)}, {vr(a,4)}, {vr(d,8)}, {vr(g.vIDX)}
        """)

    def phase(x):
        X, Y = g.BUF[x], g.BUF[1 - x]
        P = "AB"[x]
        e(f"""
L_ph{P}:
        s_cmp_lg_u32 {sr(g.mCUR)}, 0
        s_waitcnt vmcnt(0) lgkmcnt(0)
        s_cbranch_scc1 L_extra{P}
L_ph{P}_go:
        """)
        issue(g.nNXT, Y, P)
        e(f"""
        s_mov_b64 exec, 1
        ds_add_rtn_u32 {vr(g.vTK)}, {vr(g.vZ)}, {vr(g.vONE)} offset:{F_TICK}
        s_mov_b64 exec, -1
        """)
        ladder(g.nCUR, f"L_dot{P}_", f"L_dotdone{P}")
        for b in range(8):
            d = X + 8 * b
            e(f"L_dot{P}_{b}:")
            for j in range(8):
                e(f"v_dot2_f32_bf16 {vr(g.vP+b)}, {vr(d+j)}, {vr(g.vQ+j)}, {vr(g.vP+b) if j else '0'}")
        e(f"""
L_dotdone{P}:
        s_waitcnt lgkmcnt(0)
        v_readfirstlane_b32 {sr(g.sSLOT)}, {vr(g.vTK)}
        """)
        read_q(g.sNXT)
        e(f"s_add_u32 {sr(g.sN2)}, {sr(g.sSLOT)}, {2*NG}")
        read_list(g.sN2, g.nN2)
        e(f"""
        s_cmp_gt_u32 {sr(g.nCUR)}, 4
        s_cbranch_scc1 L_dual{P}
        """)
        red_single(g.vP + 4, g.vTT + 2)
        for n in (4, 3, 2, 1):
            e(f"s_cmp_eq_u32 {sr(g.nCUR)}, {n}")
            e(f"s_cbranch_scc1 L_pv{P}_{8-n}")
        e(f"s_branch L_pvdone{P}")
        e(f"L_dual{P}:")
        red_dual()
        for n in (5, 6, 7):
            e(f"s_cmp_eq_u32 {sr(g.nCUR)}, {n}")
            e(f"s_cbranch_scc1 L_pv{P}_{8-n}")
        for b in range(8):
            e(f"L_pv{P}_{b}:")
            pv_block(X + 8 * b, g.vP + 4 * (b & 1), g.vTT + 2 * (b >> 2), QUAD[b & 3])
        tt = g.vTT
        e(f"""
L_pvdone{P}:
        s_and_b32 {sr(sT0)}, {sr(g.sSLOT)}, 15
        s_lshl_b32 {sr(sT1)}, {sr(g.sCUR)}, 9
        s_lshl4_add_u32 {sr(sT0)}, {sr(sT0)}, {sr(sT1)}
        v_xor_b32 {vr(g.vA0)}, {sr(sT0)}, {vr(g.vOOF)}
        s_lshl_b32 {sr(sT0)}, {sr(g.sSLOT)}, 1
        v_mov_b32 {vr(g.vA1)}, {sr(sT0)}
        v_mov_b32 {vr(tt+2)}, {sr(g.sCUR)}
        s_mov_b32 {sr(g.sCUR)}, {sr(g.sNXT)}
        s_mov_b32 {sr(g.nCUR)}, {sr(g.nNXT)}
        s_mov_b32 {sr(g.mCUR)}, {sr(g.mNXT)}
        s_mov_b32 {sr(g.sNXT)}, {sr(g.sN2)}
        s_mov_b32 {sr(g.nNXT)}, {sr(g.nN2)}
        v_cvt_pk_bf16_f32 {vr(tt)}, {vr(g.vACC)}, {vr(g.vACC+1)}
        v_cvt_pk_bf16_f32 {vr(tt+1)}, {vr(g.vACC+2)}, {vr(g.vACC+3)}
        s_mov_b32 {sr(g.mNXT)}, 0
        s_cmp_gt_u32 {sr(g.nNXT)}, 8
        ds_write_b64 {vr(g.vA0)}, {vr(tt,2)} offset:{QO}
        ds_write_b16 {vr(g.vA1)}, {vr(tt+2)} offset:{TAB}
        v_mov_b64 {vr(g.vACC,2)}, 0
        v_mov_b64 {vr(g.vACC+2,2)}, 0
        s_cbranch_scc1 L_fix{P}
L_fixed{P}:
        s_cmp_lt_u32 {sr(g.sCUR)}, {sr(sNN)}
        """)
        if x == 0:
            e("s_cbranch_scc0 L_g_exit")
        else:
            e("s_cbranch_scc1 L_phA")

    phase(0)
    phase(1)
    e("L_g_exit:")
    stamp(8)
    probe_end()
    stamp_flush(g.vP)
    e("s_endpgm")

    e(f"""
L_g_c23:
    v_cmp_ne_u16 {sr(g.sM[3],2)}, -1, {vr(g.vD+3)}
    v_lshlrev_b32_sdwa {vr(g.vC+2)}, 2, {vr(g.vD+2)} {SDWA} src1_sel:WORD_1
    v_lshlrev_b32_sdwa {vr(g.vC+3)}, 2, {vr(g.vD+3)} {SDWA} src1_sel:WORD_1
    s_mov_b64 exec, {sr(g.sM[2],2)}
    ds_add_rtn_u32 {vr(g.vPos+2)}, {vr(g.vC+2)}, {vr(g.v65)} offset:{NCNT}
    s_mov_b64 exec, {sr(g.sM[3],2)}
    ds_add_rtn_u32 {vr(g.vPos+3)}, {vr(g.vC+3)}, {vr(g.v65)} offset:{NCNT}
    s_and_b32 exec_lo, exec_lo, 0x80808080
    s_and_b32 exec_hi, exec_hi, 0x80808080
    ds_write_b32 {vr(g.vZ)}, {vr(g.vONE)} offset:{F_OVF}
    s_mov_b64 exec, -1
    v_lshlrev_b32 {vr(g.vC+2)}, 5, {vr(g.vC+2)}
    v_lshlrev_b32 {vr(g.vC+3)}, 5, {vr(g.vC+3)}
    s_waitcnt lgkmcnt(0)
    """)
    cwrite([2, 3])
    e(f"""
    s_mov_b64 exec, -1
    s_branch L_g_c01

L_g_timeout:
    s_waitcnt vmcnt(0)
    s_mov_b64 exec, -1
    ds_write_b32 {vr(g.vZ)}, {vr(g.vONE)} offset:{F_OVF}
    s_branch L_g_cdone

L_g_allslow:
    v_mov_b32 {vr(g.vALL)}, 64
    s_nop 0
    s_branch L_g_first
    """)
    fix(g.nCUR, g.mCUR, "L_g_fix0", "L_g_fixed0")
    fix(g.nNXT, g.mNXT, "L_g_fix1", "L_g_qwait")
    fix(g.nNXT, g.mNXT, "L_fixA", "L_fixedA")
    fix(g.nNXT, g.mNXT, "L_fixB", "L_fixedB")

    def extra(x):
        Y = g.BUF[1 - x]
        P = "AB"[x]
        t = Y + 8
        p = g.vP
        e(f"""
L_extra{P}:
        s_add_u32 {sr(g.sGN)}, {sr(g.sCUR)}, {sr(sSTART)}
        s_and_b32 {sr(g.sROWB)}, {sr(g.sGN)}, 63
        s_lshl_b32 {sr(g.sROWB)}, {sr(g.sROWB)}, 7
        s_mov_b32 {sr(g.sSCAN)}, 0
        s_cmp_eq_u32 {sr(g.mCUR)}, -1
        s_cbranch_scc1 L_scan{P}
        s_mov_b32 {sr(g.sSCAN)}, {E*4}
        s_mov_b32 {sr(g.sLOOP)}, {sr(g.mCUR)}
        s_add_u32 {sr(sT0)}, {sr(g.sROWB)}, 16
L_steps{P}:
        v_add_u32 {vr(t)}, {sr(sT0)}, {vr(g.vLG)}
L_step{P}:
        ds_read_u16 {vr(t+1)}, {vr(t)} offset:{LIST}
        v_add_u32 {vr(t)}, 2, {vr(t)}
        s_waitcnt lgkmcnt(0)
        v_lshl_or_b32 {vr(Y+4)}, {vr(t+1)}, 9, {vr(g.vL16)}
        buffer_load_dwordx4 {vr(Y,4)}, {vr(Y+4)}, {sr(SX,4)}, 0 offen
        buffer_load_dwordx4 {vr(Y+4,4)}, {vr(Y+4)}, {sr(SX,4)}, 0 offen offset:256
        s_waitcnt vmcnt(0)
        """)
        for j in range(8):
            e(f"v_dot2_f32_bf16 {vr(p)}, {vr(Y+j)}, {vr(g.vQ+j)}, {vr(p) if j else '0'}")
        e("s_nop 2")
        red_single(p, g.vTT)
        e("s_nop 1")
        pv_block(Y, p + 4, g.vTT, 0)
        e(f"""
        s_sub_u32 {sr(g.sLOOP)}, {sr(g.sLOOP)}, 1
        s_cmp_lg_u32 {sr(g.sLOOP)}, 0
        s_cbranch_scc1 L_step{P}
L_scan{P}:
        s_cmp_ge_u32 {sr(g.sSCAN)}, {E*4}
        s_cbranch_scc1 L_ph{P}_go
        v_mbcnt_lo_u32_b32 {vr(t)}, -1, 0
        v_lshlrev_b32 {vr(t)}, 2, {vr(t)}
        buffer_load_dword {vr(t+1)}, {vr(t)}, {sr(SD,4)}, {sr(g.sSCAN)} offen
        buffer_load_dword {vr(t+2)}, {vr(t)}, {sr(SS,4)}, {sr(g.sSCAN)} offen
        s_add_u32 {sr(g.sSCAN)}, {sr(g.sSCAN)}, 128
        s_waitcnt vmcnt(0)
        v_cmp_eq_u32 vcc, {sr(g.sGN)}, {vr(t+1)}
        s_nop 4
        s_bcnt1_i32_b32 {sr(g.sLOOP)}, vcc_lo
        s_cbranch_scc0 L_scan{P}
        v_add_u32 {vr(t)}, {sr(g.sROWB)}, {vr(t)}
        v_mov_b32 {vr(t+3)}, -1
        v_mbcnt_lo_u32_b32 {vr(t+4)}, vcc_lo, 0
        v_mul_u32_u24 {vr(t+4)}, 65, {vr(t+4)}
        v_bfe_u32 {vr(t+4)}, {vr(t+4)}, 2, 6
        v_lshlrev_b32 {vr(t+4)}, 1, {vr(t+4)}
        v_add_u32 {vr(t+4)}, {sr(g.sROWB)}, {vr(t+4)}
        s_mov_b32 exec_hi, 0
        ds_write_b32 {vr(t)}, {vr(t+3)} offset:{LIST}
        s_mov_b32 exec_lo, vcc_lo
        ds_write_b16 {vr(t+4)}, {vr(t+2)} offset:{LIST}
        s_mov_b64 exec, -1
        s_add_u32 {sr(g.sLOOP)}, {sr(g.sLOOP)}, 3
        s_lshr_b32 {sr(g.sLOOP)}, {sr(g.sLOOP)}, 2
        s_mov_b32 {sr(sT0)}, {sr(g.sROWB)}
        s_branch L_steps{P}
        """)
    extra(0)
    extra(1)

class M:
    sM4, sWL, sKO, sXO, sTILE = 36, 37, 38, 39, 40
    sVAL = 42
    vDA = 2
    vTR = 6
    vXA = 10
    vZ, vONE = 14, 15
    vXC, vTABA, vTABS, vSCW, vSCR, vSTO, vN, vN1 = 16, 17, 18, 19, 20, 21, 22, 23
    vACC = 24
    vBUF = 72
    vT = 128
    vm = []

def wdma(srd, s, slot, tag):
    m = M
    e(f"""
    s_add_u32 m0, {sr(m.sWL)}, {slot*4096}
    s_mov_b32 {sr(m.sKO)}, {s*16384}
    """)
    for j in range(4):
        e(f"buffer_load_dwordx4 {vr(m.vDA+j)}, {sr(srd,4)}, {sr(m.sKO)} offen offset:{1024*j} lds")
        m.vm.append(tag)

def wait_vm(tag):
    vm = M.vm
    if tag not in vm:
        return
    last = max(i for i, t in enumerate(vm) if t == tag)
    e(f"s_waitcnt vmcnt({len(vm)-1-last})")
    del vm[:last + 1]

def matrix1():
    m = M
    vT = m.vT
    vXD = vT + 8
    e(f"""
L_matrix:
    s_setprio {cfg.prio_m}
    s_mov_b32 {sr(SQ+2)}, 131072
    s_mov_b32 {sr(SQ+3)}, 0x20000
    s_mov_b32 {sr(SV+2)}, 131072
    s_mov_b32 {sr(SV+3)}, 0x20000
    s_mov_b32 {sr(SO+2)}, {N*512}
    s_mov_b32 {sr(SO+3)}, 0x20000
    s_sub_u32 {sr(m.sM4)}, {sr(sWAVE)}, {NG}
    v_subrev_u32 v1, {64*NG}, v0
    v_and_b32 v0, 63, v0
    v_lshlrev_b32 v1, 3, v1
    v_cmp_gt_u32 vcc, {ONES_END-16384}, v1
    s_mul_i32 {sr(m.sWL)}, {sr(m.sM4)}, {WSLOTS*4096}
    s_add_u32 {sr(m.sWL)}, {sr(m.sWL)}, {WB}
    v_cndmask_b32 v2, 0, -1, vcc
    v_cndmask_b32 v3, 0, -1, vcc
    v_min_u32 v1, {XT-16384-8}, v1
    ds_write_b64 v1, v[2:3] offset:16384
    s_mul_i32 {sr(sT0)}, {sr(m.sM4)}, 10
    v_lshrrev_b32 v1, 5, v0
    v_add_u32 v1, {sr(sT0)}, v1
    v_and_b32 {vr(vT)}, 31, v0
    """)
    for i in range(5):
        e(f"""
        v_add_u32 {vr(vT+1)}, {2*i}, v1
        v_and_b32 {vr(vT+2)}, 15, {vr(vT+1)}
        v_xor_b32 {vr(vT+2)}, {vr(vT)}, {vr(vT+2)}
        v_lshlrev_b32 {vr(vT+2)}, 4, {vr(vT+2)}
        v_lshl_or_b32 {vr(vXD+i)}, {vr(vT+1)}, 9, {vr(vT+2)}
        """)
    e(f"""
    s_lshl_b32 {sr(m.sXO)}, {sr(sSTART)}, 9
    s_mul_i32 {sr(sT0)}, {sr(m.sM4)}, 5120
    s_add_u32 m0, {sr(sT0)}, {XT}
    v_lshlrev_b32 {vr(vT+3)}, 7, v0
    s_lshr_b32 {sr(sT0)}, s2, 3
    s_lshl_b32 {sr(sT0)}, {sr(sT0)}, 2
    s_add_u32 {sr(sT0)}, {sr(sT0)}, {sr(m.sM4)}
    s_lshl_b32 {sr(sT0)}, {sr(sT0)}, 10
    s_waitcnt lgkmcnt(0)
    s_barrier
    """)
    stamp(1)
    if cfg.wtouch:
        e(f"""
        s_mov_b64 exec, 0xff
        buffer_load_dword {vr(vT+4)}, {vr(vT+3)}, {sr(SQ,4)}, {sr(sT0)} offen
        s_mov_b64 exec, -1
        """)
        m.vm.append("t")
    for i in range(5):
        e(f"buffer_load_dwordx4 {vr(vXD+i)}, {sr(SX,4)}, {sr(m.sXO)} offen lds")
        m.vm.append("x")
        if i < 4:
            e("s_add_u32 m0, m0, 1024")
            e("s_nop 0")
    if cfg.wtouch:
        e(f"""
        s_mov_b64 exec, 0xff
        buffer_load_dword {vr(vT+4)}, {vr(vT+3)}, {sr(SV,4)}, {sr(sT0)} offen
        s_mov_b64 exec, -1
        """)
        m.vm.append("t")
    e("s_branch L_m2")

def matrix2():
    m = M
    vT = m.vT
    e("L_m2:")
    e(f"""
    v_lshrrev_b32 v1, 3, v0
    v_and_b32 {vr(vT)}, 7, v0
    v_and_b32 {vr(vT+1)}, 2, v1
    v_xor_b32 {vr(vT+1)}, {vr(vT)}, {vr(vT+1)}
    v_lshlrev_b32 {vr(vT+1)}, 4, {vr(vT+1)}
    v_lshl_or_b32 {vr(vT+1)}, v1, 9, {vr(vT+1)}
    s_lshl_b32 {sr(sT0)}, {sr(m.sM4)}, 7
    v_or_b32 {vr(m.vDA)}, {sr(sT0)}, {vr(vT+1)}
    v_xor_b32 {vr(vT+1)}, 64, {vr(m.vDA)}
    v_add_u32 {vr(m.vDA+1)}, {3072}, {vr(vT+1)}
    v_add_u32 {vr(m.vDA+2)}, {2*3072}, {vr(m.vDA)}
    v_add_u32 {vr(m.vDA+3)}, {3*3072}, {vr(vT+1)}
    v_lshl_or_b32 {vr(m.vSTO)}, {vr(vT)}, 4, {sr(sT0)}
    v_lshlrev_b32 {vr(m.vTABS)}, 1, v1
    s_lshl_b32 {sr(sT0)}, {sr(m.sM4)}, 11
    s_add_u32 {sr(sT0)}, {sr(sT0)}, {XT}
    v_xor_b32 {vr(vT+1)}, v1, {vr(vT)}
    v_lshlrev_b32 {vr(vT+1)}, 4, {vr(vT+1)}
    v_lshl_or_b32 {vr(vT+1)}, v1, 7, {vr(vT+1)}
    v_add_u32 {vr(m.vSCR)}, {sr(sT0)}, {vr(vT+1)}
    v_and_b32 {vr(vT+2)}, 15, v0
    v_lshrrev_b32 {vr(vT+1)}, 5, v0
    v_xor_b32 {vr(vT+1)}, {vr(vT+1)}, {vr(vT)}
    v_lshlrev_b32 {vr(vT+1)}, 4, {vr(vT+1)}
    v_lshl_or_b32 {vr(vT+1)}, {vr(vT+2)}, 7, {vr(vT+1)}
    v_bfe_u32 {vr(vT)}, v0, 4, 1
    v_lshl_or_b32 {vr(vT+1)}, {vr(vT)}, 3, {vr(vT+1)}
    v_add_u32 {vr(m.vSCW)}, {sr(sT0)}, {vr(vT+1)}
    v_lshlrev_b32 {vr(m.vTABA)}, 1, {vr(vT+2)}
    v_mov_b32 {vr(m.vZ)}, 0
    v_mov_b32 {vr(m.vONE)}, 1
    v_lshrrev_b32 v1, 4, v0
    v_xor_b32 {vr(vT+1)}, v1, {vr(vT+2)}
    v_lshlrev_b32 {vr(m.vXC)}, 4, {vr(vT+1)}
    v_lshl_add_u32 {vr(m.vXA)}, {vr(vT+2)}, 9, {vr(m.vXC)}
    v_xor_b32 {vr(m.vXA+1)}, 64, {vr(m.vXA)}
    v_xor_b32 {vr(m.vXA+2)}, 128, {vr(m.vXA)}
    v_xor_b32 {vr(m.vXA+3)}, 192, {vr(m.vXA)}
    v_bfe_u32 {vr(vT+1)}, v0, 2, 2
    v_lshlrev_b32 {vr(vT+5)}, 10, v1
    v_lshl_or_b32 {vr(vT+5)}, {vr(vT+1)}, 7, {vr(vT+5)}
    v_bfe_u32 {vr(vT+1)}, v0, 3, 2
    v_lshl_or_b32 {vr(vT+5)}, {vr(vT+1)}, 5, {vr(vT+5)}
    v_and_b32 {vr(vT+1)}, 3, v0
    v_lshl_or_b32 {vr(vT+5)}, {vr(vT+1)}, 3, {vr(vT+5)}
    v_add_u32 {vr(m.vTR)}, {sr(m.sWL)}, {vr(vT+5)}
    v_xor_b32 {vr(m.vTR+1)}, 32, {vr(m.vTR)}
    v_xor_b32 {vr(m.vTR+2)}, 64, {vr(m.vTR)}
    v_xor_b32 {vr(m.vTR+3)}, 96, {vr(m.vTR)}
    """)
    vQA = vT + 16
    e(f"""
    v_lshrrev_b32 v1, 5, v0
    s_lshl_b32 {sr(sT0)}, {sr(m.sM4)}, 3
    v_or_b32 v1, {sr(sT0)}, v1
    v_xor_b32 v1, v1, {vr(vT+2)}
    v_lshlrev_b32 v1, 4, v1
    v_lshl_or_b32 v1, {vr(vT+2)}, 9, v1
    v_lshl_or_b32 {vr(vQA)}, {vr(vT)}, 3, v1
    v_xor_b32 {vr(vQA+1)}, 32, {vr(vQA)}
    v_xor_b32 {vr(vQA+2)}, 64, {vr(vQA)}
    v_xor_b32 {vr(vQA+3)}, 96, {vr(vQA)}
    """)
    wdma(SQ, 0, 0, "q0")
    wait_vm("x")
    e(f"""
    s_mov_b64 exec, 1
    ds_add_u32 {vr(m.vZ)}, {vr(m.vONE)} offset:{F_XSYNC}
    s_mov_b64 exec, -1
    """)
    stamp(2)
    state = {"q": 1, "v": 0}
    def prefetch():
        e(f"""
        s_mul_i32 {sr(sT0)}, {sr(m.sM4)}, {8192*cfg.pref}
        s_add_u32 {sr(sT0)}, {sr(sT0)}, {sr(m.sXO)}
        s_add_u32 {sr(sT0)}, {sr(sT0)}, {40*512}
        """)
        for i in range(cfg.pref):
            e(f"buffer_load_dword {vr(vT+4)}, {vr(vT+3)}, {sr(SX,4)}, {sr(sT0)} offen")
            m.vm.append("p")
            if i + 1 < cfg.pref:
                e(f"s_add_u32 {sr(sT0)}, {sr(sT0)}, 8192")
    def next_q():
        s = state["q"]
        wdma(SQ, s, s % WSLOTS, f"q{s}")
        state["q"] += 1
        if cfg.pref and s == cfg.pref_at:
            prefetch()
    def next_v():
        j = state["v"]
        wdma(SV, j, (8 + j) % WSLOTS, f"v{j}")
        state["v"] += 1
    while state["q"] < min(WSLOTS, cfg.wq_ahead):
        next_q()
    e(f"""
L_m_xsync:
    ds_read_b32 {vr(vT+5)}, {vr(m.vZ)} offset:{F_XSYNC}
    {SPIN}
    s_waitcnt lgkmcnt(0)
    v_readfirstlane_b32 {sr(sT0)}, {vr(vT+5)}
    s_cmp_lg_u32 {sr(sT0)}, {NM}
    s_cbranch_scc1 L_m_xsync
    """)
    def rd_w(dst, slot):
        for t in range(4):
            for hh in range(2):
                e(f"ds_read_b64_tr_b16 {vr(dst+4*t+2*hh,2)}, {vr(m.vTR+t)} offset:{slot*4096+hh*512}")
    def rd_g1(s):
        b = m.vBUF + 28 * (s & 1)
        for t in range(3):
            e(f"ds_read_b128 {vr(b+16+4*t,4)}, {vr(m.vXA+(s&3))} offset:{XT+t*8192+(s>>2)*256}")
        rd_w(b, s % WSLOTS)
    wait_vm("q0")
    rd_g1(0)
    for s in range(8):
        if state["q"] < 8:
            if state["q"] <= s - 1 + WSLOTS:
                next_q()
        elif state["v"] < cfg.wv_early and 8 + state["v"] <= s - 1 + WSLOTS:
            next_v()
        if s < 7:
            wait_vm(f"q{s+1}")
            rd_g1(s + 1)
            e("s_waitcnt lgkmcnt(11)")
        else:
            e("s_waitcnt lgkmcnt(0)")
        b = m.vBUF + 28 * (s & 1)
        for t in range(3):
            for c in range(4):
                a = m.vACC + 16 * t + 4 * c
                e(f"v_mfma_f32_16x16x32_bf16 {vr(a,4)}, {vr(b+4*c,4)}, {vr(b+16+4*t,4)}, {vr(a,4) if s else '0'}")
    assert state["q"] == 8
    stamp(3)
    for t in range(3):
        if t == 2:
            e("s_mov_b32 exec_lo, 0x00ff00ff")
            e("s_mov_b32 exec_hi, 0x00ff00ff")
        for c in range(4):
            a = m.vACC + 16 * t + 4 * c
            e(f"v_cvt_pk_bf16_f32 {vr(a)}, {vr(a)}, {vr(a+1)}")
            e(f"v_cvt_pk_bf16_f32 {vr(a+1)}, {vr(a+2)}, {vr(a+3)}")
            e(f"ds_write_b64 {vr(vQA+c)}, {vr(a,2)} offset:{QO+t*8192}")
    e(f"""
    s_mov_b64 exec, 1
    ds_add_u32 {vr(m.vZ)}, {vr(m.vONE)} offset:{F_QRDY}
    s_mov_b64 exec, -1
    s_setprio {cfg.prio_m2}
    """)
    stamp(4)
    vW = 24
    vR = 88
    vO = 120
    vA2 = 152
    while state["v"] < min(6, cfg.wv_fly):
        next_v()
    for j in range(8):
        wait_vm(f"v{j}")
        if j < 4:
            rd_w(vW + 16 * j, (8 + j) % WSLOTS)
        while state["v"] < 8 and state["v"] <= j + cfg.wv_fly and state["v"] - 6 <= j:
            if state["v"] >= 6:
                e("s_waitcnt lgkmcnt(0)")
            next_v()
    stamp(5)
    slot = lambda j: (8 + j) % WSLOTS
    e(f"""
    s_lshl_b32 {sr(m.sTILE)}, {sr(sNN)}, 1
    s_mov_b32 {sr(sT1)}, 0xffff
L_tile:
    """)
    rd_w(vR, slot(4))
    rd_w(vR + 16, slot(5))
    e(f"""
    v_cmp_gt_i32 {sr(m.sVAL,2)}, {sr(m.sTILE)}, {vr(m.vTABA)}
L_tile_wait:
    ds_read_u16 {vr(m.vN)}, {vr(m.vTABA)} offset:{TAB}
    {SPIN}
    s_waitcnt lgkmcnt(0)
    v_cmp_eq_u32 vcc, {sr(sT1)}, {vr(m.vN)}
    v_lshl_add_u32 {vr(m.vXA)}, {vr(m.vN)}, 9, {vr(m.vXC)}
    s_and_b64 vcc, vcc, {sr(m.sVAL,2)}
    s_cbranch_scc1 L_tile_wait
    s_setprio {cfg.prio_m3}
    """)
    korder = [4, 5, 0, 1, 2, 3, 6, 7]
    lg = []
    done_x = {0}
    for s in korder:
        if (s & 3) not in done_x:
            e(f"v_xor_b32 {vr(m.vXA+(s&3))}, {64*(s&3)}, {vr(m.vXA)}")
            done_x.add(s & 3)
        e(f"ds_read_b128 {vr(vO+4*s,4)}, {vr(m.vXA+(s&3))} offset:{QO+(s>>2)*256}")
        lg.append(f"o{s}")
    e(f"""
    ds_read_u16 {vr(m.vN)}, {vr(m.vTABS)} offset:{TAB}
    ds_read_u16 {vr(m.vN1)}, {vr(m.vTABS)} offset:{TAB+16}
    """)
    lg += ["n", "n"]
    if cfg.stamps:
        e(f"""
        s_mov_b64 {sr(STAMP0+12,2)}, {sr(STAMP0+14,2)}
        s_mov_b64 {sr(STAMP0+14,2)}, {sr(STAMP0+16,2)}
        s_memrealtime {sr(STAMP0+16,2)}
        """)
    def wait_lg(tag):
        if tag not in lg:
            return
        last = max(i for i, t in enumerate(lg) if t == tag)
        e(f"s_waitcnt lgkmcnt({min(15, len(lg)-1-last)})")
        del lg[:last + 1]
    for idx, s in enumerate(korder):
        wait_lg(f"o{s}")
        wait_lg(f"w{s}")
        for c in range(4):
            a = vA2 + 4 * c
            w = (vW + 16 * s if s < 4 else vR + 16 * (s & 1)) + 4 * c
            e(f"v_mfma_f32_16x16x32_bf16 {vr(a,4)}, {vr(w,4)}, {vr(vO+4*s,4)}, {vr(a,4) if idx else '0'}")
            if s in (4, 5):
                for hh in range(2):
                    e(f"ds_read_b64_tr_b16 {vr(w+2*hh,2)}, {vr(m.vTR+c)} offset:{slot(s+2)*4096+hh*512}")
                    lg.append(f"w{s+2}")
        if s == 6:
            e(f"""
            v_lshl_add_u32 {vr(m.vN)}, {vr(m.vN)}, 9, {vr(m.vSTO)}
            v_lshl_add_u32 {vr(m.vN1)}, {vr(m.vN1)}, 9, {vr(m.vSTO)}
            """)
    e(f"""
    v_xor_b32 {vr(m.vXA+1)}, 32, {vr(m.vSCW)}
    v_xor_b32 {vr(m.vXA+2)}, 64, {vr(m.vSCW)}
    v_xor_b32 {vr(m.vXA+3)}, 96, {vr(m.vSCW)}
    v_add_u32 {vr(m.vTABA)}, 32, {vr(m.vTABA)}
    v_add_u32 {vr(m.vTABS)}, 32, {vr(m.vTABS)}
    """)
    for c in range(4):
        a = vA2 + 4 * c
        e(f"v_cvt_pk_bf16_f32 {vr(a)}, {vr(a)}, {vr(a+1)}")
        e(f"v_cvt_pk_bf16_f32 {vr(a+1)}, {vr(a+2)}, {vr(a+3)}")
        e(f"ds_write_b64 {vr(m.vSCW if c == 0 else m.vXA+c)}, {vr(a,2)}")
    e(f"""
    ds_read_b128 {vr(vO,4)}, {vr(m.vSCR)}
    ds_read_b128 {vr(vO+4,4)}, {vr(m.vSCR)} offset:1024
    v_readfirstlane_b32 {sr(sT0)}, {vr(m.vTABA)}
    s_waitcnt lgkmcnt(1)
    buffer_store_dwordx4 {vr(vO,4)}, {vr(m.vN)}, {sr(SO,4)}, {sr(m.sXO)} offen {cfg.out_pol}
    s_cmp_lt_u32 {sr(sT0)}, 96
    s_cbranch_scc0 L_m_done
    s_waitcnt lgkmcnt(0)
    buffer_store_dwordx4 {vr(vO+4,4)}, {vr(m.vN1)}, {sr(SO,4)}, {sr(m.sXO)} offen {cfg.out_pol}
    s_setprio {cfg.prio_m2}
    s_branch L_tile
L_m_done:
    """)
    stamp(9)
    probe_end()
    if cfg.pad:
        e(f"""
L_pad:
        s_memrealtime s[96:97]
        s_waitcnt lgkmcnt(0)
        s_sub_u32 s96, s96, s98
        s_cmp_lt_u32 s96, {cfg.pad}
        s_cbranch_scc1 L_pad
        """)
    stamp_flush(vO + 8)
    e("""
L_end:
    s_endpgm
    """)

header()
prologue()
gather1()
ROLE[0] = "M"
matrix1()
ROLE[0] = "G"
gather2()
ROLE[0] = "M"
matrix2()
footer()
open(sys.argv[1], "w").write("\n".join(out) + "\n")
```
